```python
import torch

def _softmax(x, axis=-1):
    return torch.softmax(x, dim=axis)

def _gelu(x):
    return torch.nn.functional.gelu(x, approximate='tanh')

def _silu(x):
    return torch.nn.functional.silu(x)

def _sigmoid(x):
    return torch.sigmoid(x)

def _layernorm(x, axis=-1, eps=1e-05):
    m = x.mean(dim=axis, keepdim=True)
    v = x.var(dim=axis, keepdim=True, unbiased=False)
    return (x - m) / torch.sqrt(v + eps)

def _scatter_add(tgt, idx, src, axis=0):
    return tgt.clone().index_add_(axis, idx, src)

def _segment_sum(src, seg, n):
    out = torch.zeros((n,) + src.shape[1:], dtype=src.dtype)
    return out.index_add_(0, seg, src)

def _pad(x, pw):
    flat = tuple((v for pair in reversed(pw) for v in pair))
    return torch.nn.functional.pad(x, flat)
kernel_name = 'gated_mix__sliding_local_dilated__mixer_gmlp__prompt'

def setup_inputs():

    _w = lambda a: (lambda t: t.to(torch.bfloat16) if t.is_floating_point() else t)(torch.as_tensor(a))

    def _A_setup():
        B, S, D = (1, 2048, 512)
        return {'x': _w((lambda *s: torch.randn(*s, dtype=torch.bfloat16) * 0.05)(B, S, D)), 'wqkv': _w((lambda *s: torch.randn(*s, dtype=torch.bfloat16) * 0.8)(D, 3 * D)), 'wo': _w((lambda *s: torch.randn(*s, dtype=torch.bfloat16) * 0.05)(D, D))}
    _A_in = _A_setup()

    def _B_setup():
        B, S, D, F = (1, 2048, 512, 1376)
        Fh = F // 2
        return {'x': _w((lambda *s: torch.randn(*s, dtype=torch.bfloat16) * 0.05)(B, S, D)), 'w_in': _w((lambda *s: torch.randn(*s, dtype=torch.bfloat16) * 0.4)(D, 2 * Fh)), 'w_sp': _w(0.01 * (lambda *s: torch.randn(*s, dtype=torch.bfloat16) * 0.4)(S, S)), 'b_sp': _w(1.0 + 0.01 * (lambda *s: torch.randn(*s, dtype=torch.bfloat16) * 0.1)(S)), 'w_out': _w((lambda *s: torch.randn(*s, dtype=torch.bfloat16) * 0.1)(Fh, D))}
    _B_in = _B_setup()
    return {'A_x': _A_in['x'], 'A_wqkv': _A_in['wqkv'], 'A_wo': _A_in['wo'], 'B_x': _B_in['x'], 'B_w_in': _B_in['w_in'], 'B_w_sp': _B_in['w_sp'], 'B_b_sp': _B_in['b_sp'], 'B_w_out': _B_in['w_out'], 'gate_w': _w((lambda *s: torch.randn(*s, dtype=torch.bfloat16) * 0.05)(512) * 16.0)}

def reference(A_x, A_wqkv, A_wo, B_x, B_w_in, B_w_sp, B_b_sp, B_w_out, gate_w):

    def _A_ref(x, wqkv, wo):
        B, S, D = x.shape
        H = 32
        Dh = D // H
        W, dil = (8, 2)
        qkv = (lambda x, *d: x.permute(*d))((x @ wqkv).reshape(B, S, 3, H, Dh), 2, 0, 3, 1, 4)
        q, k, v = (qkv[0], qkv[1], qkv[2])
        scale = Dh ** (-0.5)
        pos = torch.arange(S)
        off = torch.arange(W) * dil
        idx = pos[:, None] - off[None, :]
        mask = idx >= 0
        idx_c = torch.where(mask, idx, 0).reshape(-1)
        kg = k[:, :, idx_c, :].reshape(B, H, S, W, Dh)
        vg = v[:, :, idx_c, :].reshape(B, H, S, W, Dh)
        logits = torch.einsum('bhsd,bhswd->bhsw', q, kg) * scale
        logits = torch.where(mask[None, None, :, :], logits, -1000000000.0)
        attn = _softmax(logits, axis=-1)
        o = torch.einsum('bhsw,bhswd->bhsd', attn, vg)
        return (lambda x, *d: x.permute(*d))(o, 0, 2, 1, 3).reshape(B, S, D) @ wo

    def _B_ref(x, w_in, w_sp, b_sp, w_out):
        B, S, D = x.shape
        F = w_in.shape[-1]
        Fh = F // 2
        z = _gelu(torch.einsum('bsd,df->bsf', x, w_in))
        z1 = z[..., :Fh].clone()
        z2 = _layernorm(z[..., Fh:], axis=-1)
        g = torch.einsum('ts,bsf->btf', w_sp, z2) + b_sp[None, :, None]
        return torch.einsum('bsf,fd->bsd', z1 * g, w_out)
    x = A_x
    g = _sigmoid((x * gate_w).sum(-1, keepdims=True))
    a = _A_ref(x, A_wqkv, A_wo)
    b = _B_ref(x, B_w_in, B_w_sp, B_b_sp, B_w_out)
    return g * a + (1 - g) * b
```

```python
import sys, struct
NAME = "gated_mix__sliding_local_dilated__mixer_gmlp__prompt"
out = []
def e(s=""): out.append(s)
_lbl = [0]
def L(p="L"):
    _lbl[0] += 1
    return f"{p}_{_lbl[0]}"
def f2u(x): return struct.unpack("<I", struct.pack("<f", x))[0]
def fx(x): return "0x%08x" % f2u(x)

WS_Z = 0
WS_O = 8 << 20
WS_U = 12 << 20
WS_ST = 16 << 20
WS_G = 17 << 20
WS_SIZE = 268435456
LOG2E = 1.4426950408889634
GC0 = 2 * 0.7978845608028654 * LOG2E
GC1 = GC0 * 0.044715

def srd(s, base, size):
    e(f"  s_mov_b32 s{s}, s{base}")
    e(f"  s_and_b32 s{s+1}, s{base+1}, 0xffff")
    e(f"  s_mov_b32 s{s+2}, {size}")
    e(f"  s_mov_b32 s{s+3}, 0x00020000")

def kernel_begin(name):
    e(f".globl {name}")
    e(".p2align 8")
    e(f".type {name},@function")
    e(f"{name}:")

def kd(name, vgpr, sgpr=96):
    v = (vgpr + 7) // 8 * 8
    return f""".amdhsa_kernel {name}
  .amdhsa_next_free_vgpr {v}
  .amdhsa_next_free_sgpr {sgpr}
  .amdhsa_accum_offset {v}
  .amdhsa_group_segment_fixed_size 0
  .amdhsa_kernarg_size 96
  .amdhsa_user_sgpr_count 2
  .amdhsa_user_sgpr_kernarg_segment_ptr 1
  .amdhsa_system_sgpr_workgroup_id_x 1
.end_amdhsa_kernel"""

def vr(b, n=4): return f"v[{b}:{b+n-1}]"

K1_STAGE = 43008
K1_LDS = 3 * K1_STAGE
def gen_k1():
    name = "k1_kernel"
    ACC = 16
    XF = 76
    WF = 116
    def acc(j, bi): return ACC + (j * 5 + bi) * 4
    def xf(u, bi): return XF + (u * 5 + bi) * 4
    def wf(u, j): return WF + (u * 3 + j) * 4
    kernel_begin(name)
    e("  s_cmp_ge_u32 s2, 256")
    e("  s_cbranch_scc1 k1_end")
    e("  s_load_dwordx4 s[4:7], s[0:1], 0")
    e("  s_load_dwordx2 s[8:9], s[0:1], 32")
    e("  s_load_dwordx2 s[10:11], s[0:1], 64")
    e("  s_load_dwordx2 s[44:45], s[0:1], 88")
    e("  v_and_b32 v1, 63, v0")
    e("  v_lshrrev_b32 v2, 6, v0")
    e("  s_nop 0")
    e("  v_readfirstlane_b32 s24, v2")
    e("  s_and_b32 s25, s24, 3")
    e("  s_lshr_b32 s26, s24, 2")
    e("  s_and_b32 s46, s2, 7")
    e("  s_lshr_b32 s47, s2, 3")
    e("  s_lshr_b32 s27, s47, 4")
    e("  s_lshr_b32 s28, s47, 1")
    e("  s_and_b32 s28, s28, 7")
    e("  s_lshr_b32 s48, s46, 2")
    e("  s_lshl_b32 s48, s48, 3")
    e("  s_add_u32 s28, s28, s48")
    e("  s_and_b32 s29, s46, 3")
    e("  s_lshl_b32 s29, s29, 1")
    e("  s_and_b32 s48, s47, 1")
    e("  s_add_u32 s29, s29, s48")
    e("  s_waitcnt lgkmcnt(0)")
    srd(12, 4, 2048 * 1024)
    srd(20, 44, WS_SIZE)
    srd(52, 10, 1024)
    e("  s_lshl_b32 s48, s2, 3")
    e("  s_add_u32 s48, s48, s24")
    e("  s_lshl_b32 s49, s48, 10")
    e("  v_lshlrev_b32 v3, 4, v1")
    e("  buffer_load_dwordx4 v[140:143], v3, s[12:15], s49 offen")
    e("  buffer_load_dwordx4 v[144:147], v3, s[52:55], 0 offen")
    e("  s_cmp_eq_u32 s27, 0")
    e("  s_cselect_b32 s6, s6, s8")
    e("  s_cselect_b32 s7, s7, s9")
    e("  s_movk_i32 s30, 2752")
    e("  s_cselect_b32 s30, 3072, s30")
    e(f"  s_mov_b32 s50, {512*2752}")
    e(f"  s_cselect_b32 s50, {512*3072}, s50")
    e("  s_mov_b32 s16, s6")
    e("  s_and_b32 s17, s7, 0xffff")
    e("  s_mov_b32 s18, s50")
    e("  s_mov_b32 s19, 0x00020000")
    e("  s_lshl_b32 s35, s29, 7")
    e("  s_mul_i32 s51, s29, 11")
    e("  s_cmp_ge_u32 s29, 4")
    e("  s_cselect_b32 s48, 1, 0")
    e("  s_sub_u32 s51, s51, s48")
    e("  s_lshl_b32 s48, s51, 5")
    e("  s_cmp_eq_u32 s27, 0")
    e("  s_cselect_b32 s35, s35, s48")
    e("  s_movk_i32 s48, 128")
    e("  s_cselect_b32 s48, 1024, s48")
    e("  s_add_u32 s36, s35, s48")
    e("  s_add_u32 s37, s36, s48")
    e("  s_lshl_b32 s40, s30, 6")
    e("  s_mov_b32 s41, 0")
    e("  s_lshl_b32 s48, s28, 17")
    e("  s_lshl_b32 s49, s24, 13")
    e("  s_add_u32 s32, s48, s49")
    e("  s_add_u32 s33, s32, 65536")
    e("  s_add_u32 s34, s32, 0")
    e("  s_sub_u32 s34, s34, 16384")
    e("  s_cmp_eq_u32 s28, 0")
    e("  s_cselect_b32 s34, 0, s34")
    e("  s_lshl_b32 s56, s24, 10")
    e("  s_add_u32 s38, s56, 2048")
    e("  s_add_u32 s39, s56, 18432")
    e("  s_cmp_lt_u32 s24, 2")
    e("  s_cselect_b32 s43, 1, 0")
    e("  s_cmp_eq_u32 s27, 0")
    e("  s_cselect_b32 s43, s43, 0")
    e("  s_cmp_eq_u32 s26, 0")
    e("  s_cselect_b32 s31, 1, 0")
    e("  s_cmp_eq_u32 s27, 0")
    e("  s_cselect_b32 s31, s31, 0")
    e("  v_lshrrev_b32 v4, 3, v1")
    e("  v_and_b32 v5, 7, v1")
    e("  v_xor_b32 v5, v5, v4")
    e("  v_lshlrev_b32 v5, 4, v5")
    e("  v_lshl_add_u32 v2, v4, 10, v5")
    e("  s_and_b32 s48, s24, 1")
    e("  s_lshl_b32 s48, s48, 2")
    e("  v_lshrrev_b32 v5, 4, v1")
    e("  v_and_b32 v5, 1, v5")
    e("  v_lshlrev_b32 v5, 1, v5")
    e("  v_or_b32 v5, s48, v5")
    e("  v_and_b32 v6, 7, v1")
    e("  v_xor_b32 v5, v5, v6")
    e("  v_lshlrev_b32 v5, 4, v5")
    e("  s_lshl_b32 s48, s24, 3")
    e("  v_add_u32 v4, s48, v4")
    e("  v_mul_lo_u32 v4, v4, s30")
    e("  v_add_u32 v3, v4, v5")
    def issue(k):
        sb = (k % 3) * K1_STAGE
        for j in range(3):
            e(f"  s_add_u32 m0, s39, {sb + j*8192}")
            e(f"  s_add_u32 s42, s{35+j}, s41")
            e("  buffer_load_dwordx4 v3, s[16:19], s42 offen lds")
        e("  s_add_u32 s41, s41, s40")
        e(f"  s_add_u32 m0, s38, {sb}")
        e(f"  s_add_u32 s42, s32, {k*128}")
        e("  buffer_load_dwordx4 v2, s[12:15], s42 offen lds")
        e(f"  s_add_u32 m0, s38, {sb + 8192}")
        e(f"  s_add_u32 s42, s33, {k*128}")
        e("  buffer_load_dwordx4 v2, s[12:15], s42 offen lds")
        l = L("k1h")
        e("  s_cmp_eq_u32 s43, 0")
        e(f"  s_cbranch_scc1 {l}")
        e(f"  s_add_u32 m0, s56, {sb}")
        e(f"  s_add_u32 s42, s34, {k*128}")
        e("  buffer_load_dwordx4 v2, s[12:15], s42 offen lds")
        e(f"{l}:")
    issue(0)
    issue(1)
    e("  v_and_b32 v13, 15, v1")
    e("  v_lshrrev_b32 v14, 4, v1")
    e("  v_and_b32 v15, 7, v13")
    e("  v_xor_b32 v15, v15, v14")
    e("  v_lshlrev_b32 v15, 4, v15")
    e("  v_lshl_add_u32 v15, v13, 7, v15")
    e("  s_lshl_b32 s48, s26, 13")
    e("  v_add_u32 v4, s48, v15")
    e("  v_xor_b32 v7, 64, v4")
    for st in range(1, 3):
        e(f"  v_add_u32 v{4+st}, {st*K1_STAGE}, v4")
        e(f"  v_add_u32 v{7+st}, {st*K1_STAGE}, v7")
    e("  v_bfe_u32 v15, v1, 2, 2")
    e("  v_and_b32 v10, 1, v14")
    e("  v_lshlrev_b32 v10, 1, v10")
    e("  v_lshrrev_b32 v11, 1, v15")
    e("  v_or_b32 v10, v10, v11")
    e("  v_lshlrev_b32 v10, 1, v10")
    e("  v_bfe_u32 v11, v1, 1, 1")
    e("  s_lshl_b32 s48, s25, 1")
    e("  v_add_u32 v11, s48, v11")
    e("  v_xor_b32 v10, v10, v11")
    e("  v_lshlrev_b32 v10, 4, v10")
    e("  v_lshl_add_u32 v10, v14, 10, v10")
    e("  v_lshl_add_u32 v10, v15, 7, v10")
    e("  v_and_b32 v11, 1, v1")
    e("  v_lshl_add_u32 v10, v11, 3, v10")
    for st in range(1, 3):
        e(f"  v_add_u32 v{10+st}, {st*K1_STAGE}, v10")
    for r in range(ACC, ACC + 60):
        e(f"  v_mov_b32 v{r}, 0")
    e("  s_waitcnt vmcnt(10)")
    e("  v_mov_b32 v148, 0")
    for i in range(4):
        e(f"  v_dot2c_f32_bf16 v148, v{140+i}, v{144+i}")
    e("  s_nop 3")
    for sh in (8, 4, 2, 1):
        e("  s_nop 1")
        e(f"  v_add_f32_dpp v148, v148, v148 row_ror:{sh} row_mask:0xf bank_mask:0xf")
    e("  s_nop 0")
    e("  v_readlane_b32 s48, v148, 0")
    e("  v_readlane_b32 s49, v148, 16")
    e("  v_readlane_b32 s50, v148, 32")
    e("  v_readlane_b32 s57, v148, 48")
    e("  s_nop 1")
    e("  v_mov_b32 v148, s48")
    e("  v_add_f32 v148, s49, v148")
    e("  v_add_f32 v148, s50, v148")
    e("  v_add_f32 v148, s57, v148")
    e(f"  v_mul_f32 v148, {fx(-LOG2E)}, v148")
    e("  v_exp_f32 v148, v148")
    e("  s_nop 0")
    e("  v_add_f32 v148, 1.0, v148")
    e("  v_rcp_f32 v148, v148")
    e("  s_lshl_b32 s48, s2, 3")
    e("  s_add_u32 s48, s48, s24")
    e("  s_lshl_b32 s48, s48, 2")
    e(f"  s_add_u32 s48, s48, {WS_G}")
    e("  v_mov_b32 v149, 0")
    e("  s_mov_b64 exec, 1")
    e("  buffer_store_dword v148, v149, s[20:23], s48 offen")
    e("  s_mov_b64 exec, -1")
    def compute(k):
        st = k % 3
        for u in range(2):
            l = L("k1x")
            e("  s_cmp_eq_u32 s31, 0")
            e(f"  s_cbranch_scc1 {l}")
            e(f"  ds_read_b128 {vr(xf(u,4))}, v{4+3*u+st} offset:0")
            e(f"{l}:")
            for j in range(3):
                for q in range(2):
                    e(f"  ds_read_b64_tr_b16 {vr(wf(u,j)+2*q,2)}, v{10+st} offset:{18432 + j*8192 + u*4096 + q*512}")
            for b in range(4):
                e(f"  ds_read_b128 {vr(xf(u,b))}, v{4+3*u+st} offset:{(1+b)*2048}")
        for u in range(2):
            e(f"  s_waitcnt lgkmcnt({10 if u == 0 else 0})")
            for j in range(3):
                for b in range(4):
                    e(f"  v_mfma_f32_16x16x32_bf16 {vr(acc(j,b))}, {vr(wf(u,j))}, {vr(xf(u,b))}, {vr(acc(j,b))}")
            l = L("k1m")
            e("  s_cmp_eq_u32 s31, 0")
            e(f"  s_cbranch_scc1 {l}")
            for j in (1, 2):
                e(f"  v_mfma_f32_16x16x32_bf16 {vr(acc(j,4))}, {vr(wf(u,j))}, {vr(xf(u,4))}, {vr(acc(j,4))}")
            e(f"{l}:")
    for k in range(8):
        if k == 0:
            e("  s_waitcnt vmcnt(6)")
        elif k < 7:
            e("  s_waitcnt vmcnt(5)")
        else:
            e("  s_waitcnt vmcnt(0)")
        e("  s_barrier")
        if k + 2 < 8:
            issue(k + 2)
        compute(k)
    e("  s_nop 7")
    e("  s_nop 7")
    e("  s_barrier")
    e("  s_cmp_eq_u32 s27, 0")
    e("  s_cbranch_scc0 k1_zepi")
    e("  s_mul_i32 s48, s25, 13824")
    e("  v_lshrrev_b32 v2, 1, v14")
    e("  v_mul_u32_u24 v2, 2304, v2")
    e("  v_and_b32 v3, 1, v14")
    e("  v_lshl_add_u32 v2, v3, 3, v2")
    e("  v_lshl_add_u32 v2, v13, 4, v2")
    e("  s_lshl_b32 s49, s26, 10")
    e("  s_add_u32 s48, s48, s49")
    e("  v_add_u32 v2, s48, v2")
    for j in range(3):
        for b in range(4):
            a = acc(j, b)
            e(f"  v_cvt_pk_bf16_f32 v{a}, v{a}, v{a+1}")
            e(f"  v_cvt_pk_bf16_f32 v{a+1}, v{a+2}, v{a+3}")
            e(f"  ds_write_b64 v2, {vr(a,2)} offset:{j*4608 + (1+b)*256}")
    l = L("k1w")
    e("  s_cmp_eq_u32 s31, 0")
    e(f"  s_cbranch_scc1 {l}")
    for j in (1, 2):
        a = acc(j, 4)
        e(f"  v_cvt_pk_bf16_f32 v{a}, v{a}, v{a+1}")
        e(f"  v_cvt_pk_bf16_f32 v{a+1}, v{a+2}, v{a+3}")
        e(f"  ds_write_b64 v2, {vr(a,2)} offset:{j*4608}")
    e(f"{l}:")
    e("  s_waitcnt lgkmcnt(0)")
    e("  s_barrier")
    e("  s_mul_i32 s48, s25, 13824")
    e("  s_lshl_b32 s49, s26, 10")
    e("  s_add_u32 s48, s48, s49")
    e("  s_add_u32 s48, s48, 32")
    e("  v_lshlrev_b32 v2, 4, v1")
    e("  v_add_u32 v2, s48, v2")
    Q = 16; KR = 24; VR = 88; LG = 152; OA = 160
    for p in range(2):
        e(f"  ds_read_b128 {vr(Q+4*p)}, v2 offset:{p*2304 + 224}")
    for w in range(8):
        for p in range(2):
            e(f"  ds_read_b128 {vr(KR+8*w+4*p)}, v2 offset:{(2+p)*2304 + (7-w)*32}")
    e("  s_lshl_b32 s48, s28, 7")
    e("  s_lshl_b32 s49, s26, 6")
    e("  s_add_u32 s48, s48, s49")
    e("  v_add_u32 v3, s48, v1")
    e("  s_waitcnt lgkmcnt(0)")
    for w in range(8):
        for p in range(2):
            e(f"  ds_read_b128 {vr(VR+8*w+4*p)}, v2 offset:{(4+p)*2304 + (7-w)*32}")
    for w in range(8):
        e(f"  v_mov_b32 v{LG+w}, 0")
    for i in range(8):
        for w in range(8):
            e(f"  v_dot2c_f32_bf16 v{LG+w}, v{Q+i}, v{KR+8*w+i}")
    e(f"  v_mov_b32 v4, {fx(-1e9)}")
    e(f"  s_mov_b32 s48, {fx(0.25*LOG2E)}")
    for w in range(8):
        e(f"  v_mul_f32 v{LG+w}, s48, v{LG+w}")
    for w in range(1, 8):
        e(f"  v_cmp_le_u32 vcc, {2*w}, v3")
        e("  s_nop 1")
        e(f"  v_cndmask_b32 v{LG+w}, v4, v{LG+w}, vcc")
    e(f"  v_max3_f32 v5, v{LG}, v{LG+1}, v{LG+2}")
    e(f"  v_max3_f32 v5, v5, v{LG+3}, v{LG+4}")
    e(f"  v_max3_f32 v5, v5, v{LG+5}, v{LG+6}")
    e(f"  v_max_f32 v5, v5, v{LG+7}")
    for w in range(8):
        e(f"  v_sub_f32 v{LG+w}, v{LG+w}, v5")
    for w in range(8):
        e(f"  v_exp_f32 v{LG+w}, v{LG+w}")
    e("  s_nop 0")
    e(f"  v_add_f32 v5, v{LG}, v{LG+1}")
    for w in range(2, 8):
        e(f"  v_add_f32 v5, v5, v{LG+w}")
    e("  v_rcp_f32 v5, v5")
    e("  s_nop 0")
    for w in range(8):
        e(f"  v_mul_f32 v{LG+w}, v{LG+w}, v5")
    for w in range(8):
        e(f"  v_cvt_pk_bf16_f32 v{LG+w}, v{LG+w}, 0")
    for i in range(16):
        e(f"  v_mov_b32 v{OA+i}, 0")
    e("  s_waitcnt lgkmcnt(0)")
    for w in range(8):
        e(f"  v_lshlrev_b32 v6, 16, v{LG+w}")
        for i in range(8):
            e(f"  v_dot2c_f32_bf16 v{OA+2*i}, v{VR+8*w+i}, v{LG+w}")
            e(f"  v_dot2c_f32_bf16 v{OA+2*i+1}, v{VR+8*w+i}, v6")
    for i in range(8):
        e(f"  v_cvt_pk_bf16_f32 v{Q+i}, v{OA+2*i}, v{OA+2*i+1}")
    e("  s_lshl_b32 s48, s29, 2")
    e("  s_add_u32 s48, s48, s25")
    e("  s_lshl_b32 s48, s48, 5")
    e(f"  s_add_u32 s48, s48, {WS_O}")
    e("  v_lshlrev_b32 v3, 10, v3")
    e(f"  buffer_store_dwordx4 {vr(Q)}, v3, s[20:23], s48 offen")
    e(f"  buffer_store_dwordx4 {vr(Q+4)}, v3, s[20:23], s48 offen offset:16")
    e("  s_endpgm")
    e("k1_zepi:")
    e("  s_and_b32 s48, s29, 3")
    e("  s_cmp_eq_u32 s48, 3")
    e("  s_cselect_b32 s48, 10, 11")
    e("  s_add_u32 s49, s25, 8")
    e("  s_cmp_lt_u32 s49, s48")
    e("  s_cselect_b32 s57, 1, 0")
    e("  s_lshl_b32 s48, s28, 7")
    e("  s_lshl_b32 s49, s26, 6")
    e("  s_add_u32 s48, s48, s49")
    e("  v_add_u32 v2, s48, v13")
    e("  s_movk_i32 s48, 2752")
    e("  v_mul_lo_u32 v2, v2, s48")
    e("  v_lshl_add_u32 v2, v14, 3, v2")
    e("  s_lshl_b32 s48, s25, 5")
    e(f"  s_add_u32 s58, s48, {WS_Z}")
    e(f"  v_mov_b32 v3, {fx(-GC1)}")
    for b in range(4):
        e(f"  v_mov_b32 v{140+2*b}, 0")
        e(f"  v_mov_b32 v{141+2*b}, 0")
    def gelu_block(j):
        for b in range(4):
            a = acc(j, b)
            for r in range(4):
                e(f"  v_mul_f32 v{76+r}, v{a+r}, v{a+r}")
            for r in range(4):
                e(f"  v_fmaak_f32 v{76+r}, v{76+r}, v3, {fx(-GC0)}")
            for r in range(4):
                e(f"  v_mul_f32 v{76+r}, v{76+r}, v{a+r}")
            for r in range(4):
                e(f"  v_exp_f32 v{76+r}, v{76+r}")
            e("  s_nop 0")
            for r in range(4):
                e(f"  v_add_f32 v{76+r}, 1.0, v{76+r}")
            for r in range(4):
                e(f"  v_rcp_f32 v{76+r}, v{76+r}")
            e("  s_nop 0")
            for r in range(4):
                e(f"  v_mul_f32 v{a+r}, v{a+r}, v{76+r}")
            for r in range(4):
                e(f"  v_add_f32 v{140+2*b}, v{140+2*b}, v{a+r}")
                e(f"  v_fmac_f32 v{141+2*b}, v{a+r}, v{a+r}")
            e(f"  v_cvt_pk_bf16_f32 v{a}, v{a}, v{a+1}")
            e(f"  v_cvt_pk_bf16_f32 v{a+1}, v{a+2}, v{a+3}")
            e(f"  s_add_u32 s48, s58, s{35+j}")
            e(f"  s_add_u32 s48, s48, {b*16*2752}")
            e(f"  buffer_store_dwordx2 {vr(a,2)}, v2, s[20:23], s48 offen")
    gelu_block(0)
    gelu_block(1)
    l = L("k1z")
    e("  s_cmp_eq_u32 s57, 0")
    e(f"  s_cbranch_scc1 {l}")
    gelu_block(2)
    e(f"{l}:")
    e("  s_cmp_lt_u32 s29, 4")
    e("  s_cbranch_scc1 k1_end")
    e("  s_lshl_b32 s48, s25, 12")
    e("  s_lshl_b32 s49, s26, 9")
    e("  s_add_u32 s48, s48, s49")
    e("  v_lshlrev_b32 v4, 10, v14")
    e("  v_lshl_add_u32 v4, v13, 3, v4")
    e("  v_add_u32 v4, s48, v4")
    for b in range(4):
        e(f"  ds_write_b64 v4, {vr(140+2*b,2)} offset:{b*128}")
    e("  s_waitcnt lgkmcnt(0)")
    e("  s_barrier")
    e("  s_cmp_ge_u32 s24, 2")
    e("  s_cbranch_scc1 k1_end")
    e("  v_lshlrev_b32 v4, 3, v0")
    for t in range(16):
        e(f"  ds_read_b64 {vr(76+2*t,2)}, v4 offset:{t*1024}")
    e("  s_waitcnt lgkmcnt(0)")
    for t in range(1, 16):
        e(f"  v_add_f32 v76, v76, v{76+2*t}")
        e(f"  v_add_f32 v77, v77, v{77+2*t}")
    e("  s_lshl_b32 s48, s28, 7")
    e("  v_add_u32 v4, s48, v0")
    e("  v_lshlrev_b32 v4, 5, v4")
    e("  s_sub_u32 s48, s29, 4")
    e("  s_lshl_b32 s48, s48, 3")
    e(f"  s_add_u32 s48, s48, {WS_ST}")
    e("  buffer_store_dwordx2 v[76:77], v4, s[20:23], s48 offen")
    e("k1_end:")
    e("  s_endpgm")
    return kd(name, 184)

K2_STG0 = 16384
K2_NS = 4
K2_ZOFF = K2_STG0 + K2_NS * 8192
K2_LDS = K2_ZOFF + K2_NS * 12288
def gen_k2():
    name = "k2_kernel"
    kernel_begin(name)
    e("  s_cmp_ge_u32 s2, 256")
    e("  s_cbranch_scc1 k2_end")
    e("  s_load_dwordx4 s[4:7], s[0:1], 40")
    e("  s_load_dwordx2 s[8:9], s[0:1], 88")
    e("  v_and_b32 v1, 63, v0")
    e("  v_lshrrev_b32 v2, 6, v0")
    e("  s_nop 0")
    e("  v_readfirstlane_b32 s24, v2")
    e("  s_and_b32 s46, s2, 7")
    e("  s_lshr_b32 s47, s2, 3")
    e("  s_lshr_b32 s28, s46, 1")
    e("  s_lshl_b32 s28, s28, 3")
    e("  s_lshr_b32 s48, s47, 2")
    e("  s_add_u32 s28, s28, s48")
    e("  s_and_b32 s29, s46, 1")
    e("  s_lshl_b32 s29, s29, 2")
    e("  s_and_b32 s48, s47, 3")
    e("  s_add_u32 s29, s29, s48")
    e("  s_mul_i32 s30, s29, 5")
    e("  s_min_u32 s48, s29, 3")
    e("  s_add_u32 s30, s30, s48")
    e("  s_waitcnt lgkmcnt(0)")
    srd(12, 4, 2048 * 4096)
    srd(16, 6, 4096)
    srd(20, 8, WS_SIZE)
    e("  v_lshlrev_b32 v2, 7, v0")
    e(f"  s_mov_b32 s48, {WS_ST}")
    for i in range(8):
        e(f"  buffer_load_dwordx4 {vr(16+4*i)}, v2, s[20:23], s48 offen offset:{16*i}")
    e("  s_cmp_ge_u32 s24, 4")
    e("  s_cbranch_scc1 k2_prod")
    e("  s_and_b32 s25, s24, 1")
    e("  s_lshr_b32 s26, s24, 1")
    e("  v_and_b32 v13, 15, v1")
    e("  v_lshrrev_b32 v14, 4, v1")
    e("  s_lshl_b32 s48, s28, 6")
    e("  s_lshl_b32 s49, s26, 5")
    e("  s_add_u32 s48, s48, s49")
    e("  v_add_u32 v104, s48, v13")
    e("  v_lshlrev_b32 v105, 1, v104")
    e("  buffer_load_ushort v120, v105, s[16:19], 0 offen")
    e("  buffer_load_ushort v121, v105, s[16:19], 0 offen offset:32")
    e("  s_movk_i32 s48, 2752")
    e("  v_mul_lo_u32 v105, v104, s48")
    e("  v_lshl_add_u32 v105, v14, 3, v105")
    e("  s_mul_i32 s49, s25, 3")
    e("  s_add_u32 s49, s49, s30")
    e("  s_lshl_b32 s31, s49, 5")
    e(f"  s_add_u32 s48, s31, {WS_Z}")
    for tb in range(2):
        for fb in range(3):
            e(f"  s_add_u32 s49, s48, {tb*16*2752}")
            e(f"  buffer_load_dwordx2 {vr(108+2*(tb*3+fb),2)}, v105, s[20:23], s49 offen offset:{fb*32}")
    def stats_tbl():
        for r in range(4):
            b = 16 + 8 * r
            e(f"  v_add_f32 v{b}, v{b}, v{b+2}")
            e(f"  v_add_f32 v{b+4}, v{b+4}, v{b+6}")
            e(f"  v_add_f32 v{b+1}, v{b+1}, v{b+3}")
            e(f"  v_add_f32 v{b+5}, v{b+5}, v{b+7}")
            e(f"  v_add_f32 v{b}, v{b}, v{b+4}")
            e(f"  v_add_f32 v{b+1}, v{b+1}, v{b+5}")
            e(f"  v_mul_f32 v{b}, {fx(1.0/688)}, v{b}")
            e(f"  v_mul_f32 v{b+1}, {fx(1.0/688)}, v{b+1}")
            e(f"  v_fma_f32 v{b+1}, -v{b}, v{b}, v{b+1}")
            e(f"  v_max_f32 v{b+1}, 0, v{b+1}")
            e(f"  v_add_f32 v{b+1}, {fx(1e-5)}, v{b+1}")
            e(f"  v_rsq_f32 v{b+1}, v{b+1}")
            e("  s_nop 0")
            e(f"  v_mul_f32 v{b+3}, v{b}, v{b+1}")
            e(f"  v_mov_b32 v{b+2}, v{b+1}")
            e(f"  v_mov_b32 v{48+2*r}, v{b+2}")
            e(f"  v_mov_b32 v{49+2*r}, v{b+3}")
        e("  v_lshlrev_b32 v2, 5, v0")
        e("  ds_write_b128 v2, v[48:51]")
        e("  ds_write_b128 v2, v[52:55] offset:16")
        e("  s_waitcnt lgkmcnt(0)")
        e("  s_barrier")
    e("  s_waitcnt vmcnt(8)")
    stats_tbl()
    ACC = 16
    TF = 40
    FF = 56
    e("  v_and_b32 v15, 7, v13")
    e("  v_xor_b32 v15, v15, v14")
    e("  v_lshlrev_b32 v15, 4, v15")
    e("  v_lshl_add_u32 v15, v13, 7, v15")
    e("  s_lshl_b32 s48, s26, 12")
    e(f"  s_add_u32 s48, s48, {K2_STG0}")
    e("  v_add_u32 v4, s48, v15")
    e("  v_xor_b32 v5, 64, v4")
    e("  v_bfe_u32 v15, v1, 2, 2")
    e("  v_lshl_add_u32 v15, v14, 3, v15")
    e("  v_mul_u32_u24 v15, 192, v15")
    e("  v_and_b32 v6, 1, v1")
    e("  v_lshl_add_u32 v15, v6, 3, v15")
    e("  v_bfe_u32 v6, v1, 1, 1")
    e("  v_and_b32 v7, 1, v14")
    e("  v_lshlrev_b32 v7, 1, v7")
    e("  s_mul_i32 s48, s25, 6")
    for fb in range(3):
        e(f"  s_add_u32 s49, s48, {2*fb}")
        e(f"  v_add_u32 v8, s49, v6")
        e(f"  v_xor_b32 v8, v8, v7")
        e(f"  v_lshl_add_u32 v8, v8, 4, v15")
        e(f"  v_add_u32 v{9+fb}, {K2_ZOFF}, v8")
    for r in range(ACC, ACC + 24):
        e(f"  v_mov_b32 v{r}, 0")
    for k in range(32):
        so = (k % K2_NS) * 8192
        sz = (k % K2_NS) * 12288
        e("  s_barrier")
        for u in range(2):
            for fb in range(3):
                for q in range(2):
                    e(f"  ds_read_b64_tr_b16 {vr(FF+(u*3+fb)*4+2*q,2)}, v{9+fb} offset:{sz + u*32*192 + q*4*192}")
            for tb in range(2):
                e(f"  ds_read_b128 {vr(TF+(u*2+tb)*4)}, v{4+u} offset:{so + tb*2048}")
        for u in range(2):
            e(f"  s_waitcnt lgkmcnt({8 if u == 0 else 0})")
            for fb in range(3):
                for tb in range(2):
                    a = ACC + (fb * 2 + tb) * 4
                    e(f"  v_mfma_f32_16x16x32_bf16 {vr(a)}, {vr(FF+(u*3+fb)*4)}, {vr(TF+(u*2+tb)*4)}, {vr(a)}")
    e("  s_waitcnt vmcnt(0)")
    e("  s_nop 7")
    e("  v_lshlrev_b32 v120, 16, v120")
    e("  v_lshlrev_b32 v121, 16, v121")
    e("  s_movk_i32 s48, 1408")
    e("  v_mul_lo_u32 v105, v104, s48")
    e("  v_lshl_add_u32 v105, v14, 3, v105")
    e(f"  s_add_u32 s31, s31, {WS_U}")
    e("  s_cmp_lt_u32 s29, 3")
    e("  s_cselect_b32 s50, 6, 5")
    for fb in range(3):
        lskip = L("k2e")
        if fb == 2:
            e("  s_mul_i32 s49, s25, 3")
            e("  s_add_u32 s49, s49, 2")
            e("  s_cmp_lt_u32 s49, s50")
            lval = L("k2v")
            e(f"  s_cbranch_scc1 {lval}")
            e("  s_cmp_eq_u32 s29, 7")
            e(f"  s_cbranch_scc0 {lskip}")
            for tb in range(2):
                a = ACC + (fb * 2 + tb) * 4
                e(f"  v_mov_b32 v{a}, 0")
                e(f"  v_mov_b32 v{a+1}, 0")
                e(f"  s_add_u32 s49, s31, {tb*16*1408}")
                e(f"  buffer_store_dwordx2 {vr(a,2)}, v105, s[20:23], s49 offen offset:{fb*32}")
            e(f"  s_branch {lskip}")
            e(f"{lval}:")
        for tb in range(2):
            a = ACC + (fb * 2 + tb) * 4
            z = 108 + 2 * (tb * 3 + fb)
            e(f"  v_lshlrev_b32 v60, 16, v{z}")
            e(f"  v_and_b32 v61, 0xffff0000, v{z}")
            e(f"  v_lshlrev_b32 v62, 16, v{z+1}")
            e(f"  v_and_b32 v63, 0xffff0000, v{z+1}")
            for r in range(4):
                e(f"  v_add_f32 v{a+r}, v{a+r}, v{120+tb}")
            for r in range(4):
                e(f"  v_mul_f32 v{a+r}, v{a+r}, v{60+r}")
            e(f"  v_cvt_pk_bf16_f32 v{a}, v{a}, v{a+1}")
            e(f"  v_cvt_pk_bf16_f32 v{a+1}, v{a+2}, v{a+3}")
            e(f"  s_add_u32 s49, s31, {tb*16*1408}")
            e(f"  buffer_store_dwordx2 {vr(a,2)}, v105, s[20:23], s49 offen offset:{fb*32}")
        e(f"{lskip}:")
    e("  s_endpgm")
    e("k2_prod:")
    e("  s_sub_u32 s25, s24, 4")
    e("  v_subrev_u32 v3, 256, v0")
    e("  v_lshrrev_b32 v4, 2, v3")
    e("  v_and_b32 v5, 3, v3")
    e("  s_movk_i32 s48, 2752")
    e("  v_mul_lo_u32 v6, v4, s48")
    e("  v_lshl_add_u32 v6, v5, 4, v6")
    e("  s_lshl_b32 s48, s30, 5")
    e(f"  s_add_u32 s32, s48, {WS_Z + 1376}")
    e("  v_mul_u32_u24 v7, 192, v4")
    e("  v_bfe_u32 v8, v4, 3, 1")
    e("  v_lshlrev_b32 v8, 1, v8")
    e("  v_xor_b32 v8, v8, v5")
    e("  v_lshl_add_u32 v7, v8, 4, v7")
    e(f"  v_add_u32 v7, {K2_ZOFF}, v7")
    e("  v_lshlrev_b32 v9, 3, v4")
    e("  v_lshrrev_b32 v10, 3, v1")
    e("  v_and_b32 v11, 7, v1")
    e("  v_xor_b32 v11, v11, v10")
    e("  v_lshlrev_b32 v11, 4, v11")
    e("  v_lshl_add_u32 v10, v10, 12, v11")
    e("  s_lshl_b32 s48, s28, 18")
    e("  s_lshl_b32 s49, s25, 15")
    e("  s_add_u32 s33, s48, s49")
    e(f"  s_add_u32 s34, s33, {32*4096}")
    e("  s_lshl_b32 s35, s25, 10")
    e(f"  s_add_u32 s35, s35, {K2_STG0}")
    GL = 64
    def dma(k):
        so = (k % K2_NS) * 8192
        e(f"  s_add_u32 m0, s35, {so}")
        e(f"  s_add_u32 s42, s33, {k*128}")
        e("  buffer_load_dwordx4 v10, s[12:15], s42 offen lds")
        e(f"  s_add_u32 m0, s35, {so + 4096}")
        e(f"  s_add_u32 s42, s34, {k*128}")
        e("  buffer_load_dwordx4 v10, s[12:15], s42 offen lds")
    def gl(k):
        b = GL + (k % 3) * 12
        for i in range(3):
            e(f"  buffer_load_dwordx4 {vr(b+4*i)}, v6, s[20:23], s32 offen offset:{64*i}")
        e(f"  s_add_u32 s32, s32, {64*2752}")
    def proc(k):
        b = GL + (k % 3) * 12
        so = (k % K2_NS) * 12288
        e("  s_waitcnt lgkmcnt(0)")
        for i in range(3):
            for d in range(4):
                src = b + 4 * i + d
                e(f"  v_lshlrev_b32 v{100+2*d}, 16, v{src}")
                e(f"  v_and_b32 v{101+2*d}, 0xffff0000, v{src}")
            for d in range(4):
                e(f"  v_pk_fma_f32 {vr(100+2*d,2)}, {vr(100+2*d,2)}, v[12:13], v[14:15] op_sel_hi:[1,0,0] neg_lo:[0,0,1] neg_hi:[0,0,1]")
            for d in range(4):
                e(f"  v_cvt_pk_bf16_f32 v{108+d}, v{100+2*d}, v{101+2*d}")
            e(f"  ds_write_b128 v7, v[108:111] offset:{so + 64*i}")
            e("  s_nop 0")
    dma(0); gl(0); dma(1); gl(1)
    e("  s_waitcnt vmcnt(10)")
    stats_tbl()
    for k in range(-1, 31):
        n = k + 1
        e(f"  ds_read_b64 v[12:13], v9 offset:{n*512}")
        cnt = 5
        if k + 3 < 32:
            dma(k + 3); cnt += 2
        if k + 2 >= 32: cnt -= 5
        e(f"  s_waitcnt vmcnt({cnt}) lgkmcnt(0)")
        e("  v_mov_b32 v14, v13")
        proc(n)
        if k + 3 < 32:
            gl(k + 3)
        e("  s_waitcnt lgkmcnt(0)")
        e("  s_barrier")
    e("k2_end:")
    e("  s_endpgm")
    return kd(name, 128)

K3_STAGE = 16384
K3_NS = 4
K3_LDS = K3_NS * K3_STAGE
def gen_k3():
    name = NAME + "_kernel"
    kernel_begin(name)
    e("  s_cmp_ge_u32 s2, 256")
    e("  s_cbranch_scc1 k3_end")
    e("  s_load_dwordx2 s[4:5], s[0:1], 16")
    e("  s_load_dwordx2 s[6:7], s[0:1], 56")
    e("  s_load_dwordx2 s[8:9], s[0:1], 72")
    e("  s_load_dwordx2 s[10:11], s[0:1], 88")
    e("  v_and_b32 v1, 63, v0")
    e("  v_lshrrev_b32 v2, 6, v0")
    e("  s_nop 0")
    e("  v_readfirstlane_b32 s24, v2")
    e("  s_and_b32 s46, s2, 7")
    e("  s_lshr_b32 s47, s2, 3")
    e("  s_lshr_b32 s28, s46, 1")
    e("  s_lshl_b32 s28, s28, 3")
    e("  s_lshr_b32 s48, s47, 2")
    e("  s_add_u32 s28, s28, s48")
    e("  s_and_b32 s29, s46, 1")
    e("  s_lshl_b32 s29, s29, 2")
    e("  s_and_b32 s48, s47, 3")
    e("  s_add_u32 s29, s29, s48")
    e("  s_and_b32 s25, s24, 1")
    e("  s_lshr_b32 s26, s24, 1")
    e("  s_waitcnt lgkmcnt(0)")
    srd(12, 4, 512 * 1024)
    srd(16, 6, 688 * 1024)
    srd(20, 10, WS_SIZE)
    srd(52, 8, 2048 * 1024)
    e("  v_and_b32 v13, 15, v1")
    e("  v_lshrrev_b32 v14, 4, v1")
    e("  s_lshl_b32 s48, s28, 6")
    e("  s_lshl_b32 s49, s26, 5")
    e("  s_add_u32 s48, s48, s49")
    e("  v_add_u32 v104, s48, v13")
    e("  v_lshlrev_b32 v105, 2, v104")
    e(f"  s_mov_b32 s48, {WS_G}")
    e("  buffer_load_dword v120, v105, s[20:23], s48 offen")
    e("  buffer_load_dword v121, v105, s[20:23], s48 offen offset:64")
    e("  v_lshrrev_b32 v4, 3, v1")
    e("  v_and_b32 v5, 7, v1")
    e("  v_xor_b32 v5, v5, v4")
    e("  v_lshlrev_b32 v5, 4, v5")
    e("  v_lshl_add_u32 v2, v4, 10, v5")
    e("  v_mul_u32_u24 v3, 1408, v4")
    e("  v_add_u32 v3, v3, v5")
    e("  s_and_b32 s48, s24, 1")
    e("  s_lshl_b32 s48, s48, 2")
    e("  v_lshrrev_b32 v5, 4, v1")
    e("  v_and_b32 v5, 1, v5")
    e("  v_lshlrev_b32 v5, 1, v5")
    e("  v_or_b32 v5, s48, v5")
    e("  v_and_b32 v6, 7, v1")
    e("  v_xor_b32 v5, v5, v6")
    e("  v_lshlrev_b32 v5, 4, v5")
    e("  v_lshl_add_u32 v15, v4, 10, v5")
    e("  s_lshl_b32 s48, s28, 6")
    e("  s_lshl_b32 s49, s24, 3")
    e("  s_add_u32 s48, s48, s49")
    e("  s_lshl_b32 s32, s48, 10")
    e(f"  s_add_u32 s32, s32, {WS_O}")
    e("  s_mul_i32 s33, s48, 1408")
    e(f"  s_add_u32 s33, s33, {WS_U}")
    e("  s_lshl_b32 s34, s24, 13")
    e("  s_lshl_b32 s48, s29, 7")
    e("  s_add_u32 s34, s34, s48")
    e("  s_lshl_b32 s35, s24, 10")
    def issue(k):
        so = (k % K3_NS) * K3_STAGE
        for hf in range(2):
            e(f"  s_add_u32 m0, s35, {so + hf*4096}")
            if k < 8:
                e(f"  s_add_u32 s42, s32, {k*128 + hf*32*1024}")
                e("  buffer_load_dwordx4 v2, s[20:23], s42 offen lds")
            else:
                e(f"  s_add_u32 s42, s33, {(k-8)*128 + hf*32*1408}")
                e("  buffer_load_dwordx4 v3, s[20:23], s42 offen lds")
        for hf in range(2):
            e(f"  s_add_u32 m0, s35, {so + 8192 + hf*4096}")
            kk = k if k < 8 else k - 8
            e(f"  s_add_u32 s42, s34, {kk*65536 + hf*32*1024}")
            e(f"  buffer_load_dwordx4 v15, s[{12 if k < 8 else 16}:{15 if k < 8 else 19}], s42 offen lds")
    issue(0); issue(1); issue(2)
    ACA = 16; ACB = 32; TF = 48; WF = 64
    e("  v_and_b32 v6, 7, v13")
    e("  v_xor_b32 v6, v6, v14")
    e("  v_lshlrev_b32 v6, 4, v6")
    e("  v_lshl_add_u32 v6, v13, 7, v6")
    e("  s_lshl_b32 s48, s26, 12")
    e("  v_add_u32 v4, s48, v6")
    e("  v_xor_b32 v5, 64, v4")
    e("  v_bfe_u32 v6, v1, 2, 2")
    e("  v_and_b32 v7, 1, v14")
    e("  v_lshlrev_b32 v7, 1, v7")
    e("  v_lshrrev_b32 v8, 1, v6")
    e("  v_or_b32 v7, v7, v8")
    e("  v_lshlrev_b32 v7, 1, v7")
    e("  v_bfe_u32 v8, v1, 1, 1")
    e("  v_lshlrev_b32 v9, 10, v14")
    e("  v_lshl_add_u32 v9, v6, 7, v9")
    e("  v_and_b32 v6, 1, v1")
    e("  v_lshl_add_u32 v9, v6, 3, v9")
    e("  s_lshl_b32 s48, s25, 2")
    for nb in range(2):
        e(f"  s_add_u32 s49, s48, {2*nb}")
        e("  v_add_u32 v6, s49, v8")
        e("  v_xor_b32 v6, v6, v7")
        e(f"  v_lshl_add_u32 v{10+nb}, v6, 4, v9")
    for r in range(16, 48):
        e(f"  v_mov_b32 v{r}, 0")
    NK = 19
    for k in range(NK):
        so = (k % K3_NS) * K3_STAGE
        rem = min(NK - 1 - k, 2)
        e(f"  s_waitcnt vmcnt({4*rem})")
        e("  s_barrier")
        if k + 3 < NK: issue(k + 3)
        AC = ACA if k < 8 else ACB
        for u in range(2):
            for nb in range(2):
                for q in range(2):
                    e(f"  ds_read_b64_tr_b16 {vr(WF+(u*2+nb)*4+2*q,2)}, v{10+nb} offset:{so + 8192 + u*4096 + q*512}")
            for tb in range(2):
                e(f"  ds_read_b128 {vr(TF+(u*2+tb)*4)}, v{4+u} offset:{so + tb*2048}")
        for u in range(2):
            e(f"  s_waitcnt lgkmcnt({6 if u == 0 else 0})")
            for nb in range(2):
                for tb in range(2):
                    a = AC + (nb * 2 + tb) * 4
                    e(f"  v_mfma_f32_16x16x32_bf16 {vr(a)}, {vr(WF+(u*2+nb)*4)}, {vr(TF+(u*2+tb)*4)}, {vr(a)}")
    e("  s_nop 7")
    e("  s_nop 7")
    e("  v_sub_f32 v122, 1.0, v120")
    e("  v_sub_f32 v123, 1.0, v121")
    e("  v_lshlrev_b32 v105, 10, v104")
    e("  v_lshl_add_u32 v105, v14, 3, v105")
    e("  s_lshl_b32 s48, s29, 7")
    e("  s_lshl_b32 s49, s25, 6")
    e("  s_add_u32 s48, s48, s49")
    for nb in range(2):
        for tb in range(2):
            a = ACA + (nb * 2 + tb) * 4
            b = ACB + (nb * 2 + tb) * 4
            for r in range(4):
                e(f"  v_mul_f32 v{a+r}, v{a+r}, v{120+tb}")
            for r in range(4):
                e(f"  v_fmac_f32 v{a+r}, v{b+r}, v{122+tb}")
            e(f"  v_cvt_pk_bf16_f32 v{a}, v{a}, v{a+1}")
            e(f"  v_cvt_pk_bf16_f32 v{a+1}, v{a+2}, v{a+3}")
            e(f"  s_add_u32 s49, s48, {tb*16*1024}")
            e(f"  buffer_store_dwordx2 {vr(a,2)}, v105, s[52:55], s49 offen offset:{nb*32}")
    e("k3_end:")
    e("  s_endpgm")
    return kd(name, 128)

def header(launches):
    ref = open("cdna_kernels/%s.s.ref" % NAME).read().splitlines()
    for l in ref:
        if l.startswith("; @launch") or not l.startswith(";"): break
        if "Override launch" in l or "grid=ceil" in l: continue
        e(l)
    for l in launches: e(l)
    e('.amdgcn_target "amdgcn-amd-amdhsa--gfx950"')
    e(".text")

if __name__ == "__main__":
    which = sys.argv[1] if len(sys.argv) > 1 else "all"
    launches = [f"; @launch kernel=k1_kernel grid=(256,1,1) block=(512,1,1) lds={K1_LDS}",
                f"; @launch kernel=k2_kernel grid=(256,1,1) block=(512,1,1) lds={K2_LDS}",
                f"; @launch kernel={NAME}_kernel grid=(256,1,1) block=(256,1,1) lds={K3_LDS}"]
    header(launches)
    kds = [gen_k1(), gen_k2(), gen_k3()]
    e('.section .rodata,"a"')
    for k in kds:
        e(".p2align 6")
        e(k)
    dst = sys.argv[2] if len(sys.argv) > 2 else "k.s"
    open(dst, "w").write("\n".join(out) + "\n")
    print("wrote", dst, len(out), "lines")
```

```python
import sys, struct, os
EXP = os.environ.get("EXP", "")
NAME = "gated_mix__sliding_local_dilated__mixer_gmlp__prompt"
out = []
def e(s=""): out.append(s)
_lbl = [0]
def L(p="L"):
    _lbl[0] += 1
    return f"{p}_{_lbl[0]}"
def f2u(x): return struct.unpack("<I", struct.pack("<f", x))[0]
def fx(x): return "0x%08x" % f2u(x)

WS_Z = 0
WS_O = 8 << 20
WS_U = 12 << 20
WS_ST = 16 << 20
WS_G = 17 << 20
WS_Z2 = 20 << 20
WS_SIZE = 268435456
LOG2E = 1.4426950408889634
GC0 = 2 * 0.7978845608028654 * LOG2E
GC1 = GC0 * 0.044715

def srd(s, base, size):
    e(f"  s_mov_b32 s{s}, s{base}")
    e(f"  s_and_b32 s{s+1}, s{base+1}, 0xffff")
    e(f"  s_mov_b32 s{s+2}, {size}")
    e(f"  s_mov_b32 s{s+3}, 0x00020000")

def kernel_begin(name):
    e(f".globl {name}")
    e(".p2align 8")
    e(f".type {name},@function")
    e(f"{name}:")

def kd(name, vgpr, sgpr=96):
    v = (vgpr + 7) // 8 * 8
    return f""".amdhsa_kernel {name}
  .amdhsa_next_free_vgpr {v}
  .amdhsa_next_free_sgpr {sgpr}
  .amdhsa_accum_offset {v}
  .amdhsa_group_segment_fixed_size 0
  .amdhsa_kernarg_size 96
  .amdhsa_user_sgpr_count 2
  .amdhsa_user_sgpr_kernarg_segment_ptr 1
  .amdhsa_system_sgpr_workgroup_id_x 1
.end_amdhsa_kernel"""

STAMP = "stamp" in EXP
def stamp(i, vreg=127):
    if not STAMP: return
    e("  s_memtime s[90:91]")
    e("  s_waitcnt lgkmcnt(0)")
    e(f"  v_writelane_b32 v{vreg}, s90, {i}")
def stamp_flush(srd, vreg=127, tmp=126, mb=32):
    if not STAMP: return
    e("  s_lshl_b32 s90, s2, 4")
    e("  s_add_u32 s90, s90, s24")
    e("  s_lshl_b32 s90, s90, 8")
    e(f"  s_add_u32 s90, s90, {mb<<20}")
    e(f"  v_and_b32 v{tmp}, 63, v0")
    e(f"  v_lshlrev_b32 v{tmp}, 2, v{tmp}")
    e(f"  buffer_store_dword v{vreg}, v{tmp}, s[{srd}:{srd+3}], s90 offen")

def vr(b, n=4): return f"v[{b}:{b+n-1}]"

K1_STAGE = 43008
K1Z_STAGE = 16384 + 12288
K1Z_NS = 4
K1Z_ST = K1Z_NS * K1Z_STAGE
K1_LDS = 3 * K1_STAGE
SV = 163

def gelu_pk(regs, tmp, vc1, vone):
    n = len(regs)
    for i, r in enumerate(regs):
        e(f"  v_pk_mul_f32 {vr(tmp+2*i,2)}, {vr(r,2)}, {vr(r,2)}")
    for i, r in enumerate(regs):
        e(f"  v_pk_fma_f32 {vr(tmp+2*i,2)}, {vr(tmp+2*i,2)}, {vr(vc1,2)}, {vr(vc1+2,2)}")
    for i, r in enumerate(regs):
        e(f"  v_pk_mul_f32 {vr(tmp+2*i,2)}, {vr(tmp+2*i,2)}, {vr(r,2)}")
    for i in range(2 * n):
        e(f"  v_exp_f32 v{tmp+i}, v{tmp+i}")
    e("  s_nop 0")
    for i, r in enumerate(regs):
        e(f"  v_pk_add_f32 {vr(tmp+2*i,2)}, {vr(tmp+2*i,2)}, {vr(vone,2)}")
    for i in range(2 * n):
        e(f"  v_rcp_f32 v{tmp+i}, v{tmp+i}")
    e("  s_nop 0")
    for i, r in enumerate(regs):
        e(f"  v_pk_mul_f32 {vr(r,2)}, {vr(r,2)}, {vr(tmp+2*i,2)}")

def k1_prefetch():
    if "nopf" in EXP: return
    e("  s_load_dwordx2 s[76:77], s[0:1], 16")
    e("  s_load_dwordx2 s[78:79], s[0:1], 40")
    e("  s_load_dwordx2 s[80:81], s[0:1], 56")
    e("  s_lshl_b32 s48, s2, 3")
    e("  s_add_u32 s48, s48, s24")
    e("  s_lshl_b32 s49, s48, 10")
    e("  v_lshlrev_b32 v160, 4, v1")
    e("  buffer_load_dwordx4 v[164:167], v160, s[12:15], s49 offen")
    srd(84, 6, 512 * 3072)
    e("  buffer_load_dwordx4 v[164:167], v160, s[84:87], s49 offen")
    srd(84, 8, 512 * 2752)
    e("  buffer_load_dwordx4 v[164:167], v160, s[84:87], s49 offen")
    e("  s_waitcnt lgkmcnt(0)")
    srd(84, 78, 2048 * 4096)
    e("  s_lshl_b32 s50, s48, 12")
    for j in range(4):
        e(f"  buffer_load_dwordx4 v[164:167], v160, s[84:87], s50 offen offset:{j*1024}")
    srd(84, 76, 512 * 1024)
    e("  buffer_load_dwordx4 v[164:167], v160, s[84:87], s49 offen")
    srd(84, 80, 688 * 1024)
    e("  buffer_load_dwordx4 v[164:167], v160, s[84:87], s49 offen")

def gen_k1():
    name = "k1_kernel"
    kernel_begin(name)
    e("  s_cmp_ge_u32 s2, 256")
    e("  s_cbranch_scc1 k1_end")
    if STAMP: e(f"  v_mov_b32 v{SV}, 0")
    stamp(0, SV)
    e("  s_load_dwordx4 s[4:7], s[0:1], 0")
    e("  s_load_dwordx2 s[8:9], s[0:1], 32")
    e("  s_load_dwordx2 s[10:11], s[0:1], 64")
    e("  s_load_dwordx4 s[60:63], s[0:1], 80")
    e("  v_and_b32 v1, 63, v0")
    e("  v_lshrrev_b32 v2, 6, v0")
    e("  s_nop 0")
    e("  v_readfirstlane_b32 s24, v2")
    e("  s_and_b32 s46, s2, 7")
    e("  s_lshr_b32 s47, s2, 3")
    e("  s_lshr_b32 s27, s47, 4")
    e("  s_lshr_b32 s28, s47, 1")
    e("  s_and_b32 s28, s28, 7")
    e("  s_lshr_b32 s48, s46, 2")
    e("  s_lshl_b32 s48, s48, 3")
    e("  s_add_u32 s28, s28, s48")
    e("  s_and_b32 s29, s46, 3")
    e("  s_lshl_b32 s29, s29, 1")
    e("  s_and_b32 s48, s47, 1")
    e("  s_add_u32 s29, s29, s48")
    e("  v_and_b32 v13, 15, v1")
    e("  v_lshrrev_b32 v14, 4, v1")
    e("  s_waitcnt lgkmcnt(0)")
    srd(12, 4, 2048 * 1024)
    srd(20, 62, WS_SIZE)
    e("  s_cmp_ge_u32 s24, 8")
    e("  s_cbranch_scc1 k1_load")
    k1_prefetch()
    e("  s_cmp_eq_u32 s27, 0")
    e("  s_cbranch_scc0 k1_zc")
    ACC = 16; XF = 76; WF = 116
    def acc(j, bi): return ACC + (j * 5 + bi) * 4
    def xf(u, bi): return XF + (u * 5 + bi) * 4
    def wf(u, j): return WF + (u * 3 + j) * 4
    e("  s_and_b32 s25, s24, 3")
    e("  s_lshr_b32 s26, s24, 2")
    e("  s_cmp_eq_u32 s26, 0")
    e("  s_cselect_b32 s31, 1, 0")
    e("  v_and_b32 v15, 7, v13")
    e("  v_xor_b32 v15, v15, v14")
    e("  v_lshlrev_b32 v15, 4, v15")
    e("  v_lshl_add_u32 v15, v13, 7, v15")
    e("  s_lshl_b32 s48, s26, 13")
    e("  v_add_u32 v4, s48, v15")
    e("  v_xor_b32 v7, 64, v4")
    for st in range(1, 3):
        e(f"  v_add_u32 v{4+st}, {st*K1_STAGE}, v4")
        e(f"  v_add_u32 v{7+st}, {st*K1_STAGE}, v7")
    e("  v_bfe_u32 v15, v1, 2, 2")
    e("  v_and_b32 v10, 1, v14")
    e("  v_lshlrev_b32 v10, 1, v10")
    e("  v_lshrrev_b32 v11, 1, v15")
    e("  v_or_b32 v10, v10, v11")
    e("  v_lshlrev_b32 v10, 1, v10")
    e("  v_bfe_u32 v11, v1, 1, 1")
    e("  s_lshl_b32 s48, s25, 1")
    e("  v_add_u32 v11, s48, v11")
    e("  v_xor_b32 v10, v10, v11")
    e("  v_lshlrev_b32 v10, 4, v10")
    e("  v_lshl_add_u32 v10, v14, 10, v10")
    e("  v_lshl_add_u32 v10, v15, 7, v10")
    e("  v_and_b32 v11, 1, v1")
    e("  v_lshl_add_u32 v10, v11, 3, v10")
    for st in range(1, 3):
        e(f"  v_add_u32 v{10+st}, {st*K1_STAGE}, v10")
    for r in range(ACC, ACC + 60):
        e(f"  v_mov_b32 v{r}, 0")
    def qreads(k, u):
        st = k % 3
        l = L("k1x")
        e("  s_cmp_eq_u32 s31, 0")
        e(f"  s_cbranch_scc1 {l}")
        e(f"  ds_read_b128 {vr(xf(u,4))}, v{4+3*u+st} offset:0")
        e(f"{l}:")
        for j in range(3):
            for q in range(2):
                e(f"  ds_read_b64_tr_b16 {vr(wf(u,j)+2*q,2)}, v{10+st} offset:{18432 + j*8192 + u*4096 + q*512}")
        for b in range(4):
            e(f"  ds_read_b128 {vr(xf(u,b))}, v{4+3*u+st} offset:{(1+b)*2048}")
    def qmfma(u):
        for j in range(3):
            for b in range(4):
                e(f"  v_mfma_f32_16x16x32_bf16 {vr(acc(j,b))}, {vr(wf(u,j))}, {vr(xf(u,b))}, {vr(acc(j,b))}")
        l = L("k1m")
        e("  s_cmp_eq_u32 s31, 0")
        e(f"  s_cbranch_scc1 {l}")
        for j in (1, 2):
            e(f"  v_mfma_f32_16x16x32_bf16 {vr(acc(j,4))}, {vr(wf(u,j))}, {vr(xf(u,4))}, {vr(acc(j,4))}")
        e(f"{l}:")
    if "notouch" not in EXP:
        e("  s_cmp_ge_u32 s24, 4")
        e("  s_cbranch_scc1 k1_tw%d" % 0)
        e("  s_lshl_b32 s48, s27, 1")
        e("  s_and_b32 s49, s47, 1")
        e("  s_add_u32 s48, s48, s49")
        e("  s_lshl_b32 s48, s48, 5")
        e("  s_lshl_b32 s49, s24, 3")
        e("  s_add_u32 s48, s48, s49")
        e("  s_lshl_b32 s49, s28, 7")
        e("  s_add_u32 s48, s48, s49")
        e("  s_lshl_b32 s48, s48, 10")
        e("  v_lshrrev_b32 v161, 3, v1")
        e("  v_and_b32 v162, 7, v1")
        e("  v_lshlrev_b32 v162, 7, v162")
        e("  v_lshl_add_u32 v161, v161, 10, v162")
        e("  buffer_load_dword v160, v161, s[12:15], s48 offen")
        e("  s_branch k1_td%d" % 0)
        e("k1_tw%d:" % 0)
        e("  s_and_b32 s48, s28, 7")
        e("  s_lshl_b32 s48, s48, 6")
        e("  v_add_u32 v161, s48, v1")
        srd(16, 6, 512 * 3072)
        e("  v_mul_u32_u24 v161, 3072, v161")
        e("  s_sub_u32 s48, s24, 4")
        e("  s_min_u32 s48, s48, 2")
        e("  s_lshl_b32 s48, s48, 10")
        e("  s_lshl_b32 s49, s29, 7")
        e("  s_add_u32 s48, s48, s49")
        e("  buffer_load_dword v160, v161, s[16:19], s48 offen")
        e("k1_td0:")
    e("  s_barrier")
    stamp(1, SV)
    qreads(0, 0)
    for k in range(8):
        qreads(k, 1)
        e("  s_waitcnt lgkmcnt(10)")
        qmfma(0)
        e("  s_waitcnt lgkmcnt(0)")
        if k < 7:
            stamp(2 + 2*k, SV)
            e("  s_barrier")
            stamp(3 + 2*k, SV)
            qreads(k + 1, 0)
        qmfma(1)
    e("  s_nop 7")
    e("  s_nop 7")
    stamp(30, SV)
    e("  s_barrier")
    stamp(31, SV)
    e("  s_mul_i32 s48, s25, 13824")
    e("  v_lshrrev_b32 v2, 1, v14")
    e("  v_mul_u32_u24 v2, 2304, v2")
    e("  v_and_b32 v3, 1, v14")
    e("  v_lshl_add_u32 v2, v3, 3, v2")
    e("  v_lshl_add_u32 v2, v13, 4, v2")
    e("  s_lshl_b32 s49, s26, 10")
    e("  s_add_u32 s48, s48, s49")
    e("  v_add_u32 v2, s48, v2")
    for j in range(3):
        for b in range(4):
            a = acc(j, b)
            e(f"  v_cvt_pk_bf16_f32 v{a}, v{a}, v{a+1}")
            e(f"  v_cvt_pk_bf16_f32 v{a+1}, v{a+2}, v{a+3}")
            e(f"  ds_write_b64 v2, {vr(a,2)} offset:{j*4608 + (1+b)*256}")
    l = L("k1w")
    e("  s_cmp_eq_u32 s31, 0")
    e(f"  s_cbranch_scc1 {l}")
    for j in (1, 2):
        a = acc(j, 4)
        e(f"  v_cvt_pk_bf16_f32 v{a}, v{a}, v{a+1}")
        e(f"  v_cvt_pk_bf16_f32 v{a+1}, v{a+2}, v{a+3}")
        e(f"  ds_write_b64 v2, {vr(a,2)} offset:{j*4608}")
    e(f"{l}:")
    e("  s_waitcnt lgkmcnt(0)")
    e("  s_barrier")
    e("  s_mul_i32 s48, s25, 13824")
    e("  s_lshl_b32 s49, s26, 10")
    e("  s_add_u32 s48, s48, s49")
    e("  s_add_u32 s48, s48, 32")
    e("  v_lshlrev_b32 v2, 4, v1")
    e("  v_add_u32 v2, s48, v2")
    Q = 16; KR = 24; VR = 24; LG = 88; OA = 96
    for p in range(2):
        e(f"  ds_read_b128 {vr(Q+4*p)}, v2 offset:{p*2304 + 224}")
    for w in range(8):
        for p in range(2):
            e(f"  ds_read_b128 {vr(KR+8*w+4*p)}, v2 offset:{(2+p)*2304 + (7-w)*32}")
    e("  s_lshl_b32 s48, s28, 7")
    e("  s_lshl_b32 s49, s26, 6")
    e("  s_add_u32 s48, s48, s49")
    e("  v_add_u32 v3, s48, v1")
    for w in range(8):
        e(f"  v_mov_b32 v{LG+w}, 0")
    e("  s_waitcnt lgkmcnt(0)")
    for i in range(8):
        for w in range(8):
            e(f"  v_dot2c_f32_bf16 v{LG+w}, v{Q+i}, v{KR+8*w+i}")
    for w in range(8):
        for p in range(2):
            e(f"  ds_read_b128 {vr(VR+8*w+4*p)}, v2 offset:{(4+p)*2304 + (7-w)*32}")
    e(f"  v_mov_b32 v4, {fx(-1e9)}")
    e(f"  s_mov_b32 s48, {fx(0.25*LOG2E)}")
    for w in range(8):
        e(f"  v_mul_f32 v{LG+w}, s48, v{LG+w}")
    for w in range(1, 8):
        e(f"  v_cmp_le_u32 vcc, {2*w}, v3")
        e("  s_nop 1")
        e(f"  v_cndmask_b32 v{LG+w}, v4, v{LG+w}, vcc")
    e(f"  v_max3_f32 v5, v{LG}, v{LG+1}, v{LG+2}")
    e(f"  v_max3_f32 v5, v5, v{LG+3}, v{LG+4}")
    e(f"  v_max3_f32 v5, v5, v{LG+5}, v{LG+6}")
    e(f"  v_max_f32 v5, v5, v{LG+7}")
    for w in range(8):
        e(f"  v_sub_f32 v{LG+w}, v{LG+w}, v5")
    for w in range(8):
        e(f"  v_exp_f32 v{LG+w}, v{LG+w}")
    e("  s_nop 0")
    e(f"  v_add_f32 v5, v{LG}, v{LG+1}")
    for w in range(2, 8):
        e(f"  v_add_f32 v5, v5, v{LG+w}")
    e("  v_rcp_f32 v5, v5")
    e("  s_nop 0")
    for w in range(8):
        e(f"  v_mul_f32 v{LG+w}, v{LG+w}, v5")
    for w in range(8):
        e(f"  v_cvt_pk_bf16_f32 v{LG+w}, v{LG+w}, 0")
    for i in range(16):
        e(f"  v_mov_b32 v{OA+i}, 0")
    e("  s_waitcnt lgkmcnt(0)")
    for w in range(8):
        e(f"  v_lshlrev_b32 v6, 16, v{LG+w}")
        for i in range(8):
            e(f"  v_dot2c_f32_bf16 v{OA+2*i}, v{VR+8*w+i}, v{LG+w}")
            e(f"  v_dot2c_f32_bf16 v{OA+2*i+1}, v{VR+8*w+i}, v6")
    e("  s_nop 2")
    for i in range(8):
        e(f"  v_cvt_pk_bf16_f32 v{Q+i}, v{OA+2*i}, v{OA+2*i+1}")
    e("  s_lshl_b32 s48, s29, 2")
    e("  s_add_u32 s48, s48, s25")
    e("  s_lshl_b32 s48, s48, 5")
    e(f"  s_add_u32 s48, s48, {WS_O}")
    e("  v_lshlrev_b32 v3, 10, v3")
    e(f"  buffer_store_dwordx4 {vr(Q)}, v3, s[20:23], s48 offen")
    e(f"  buffer_store_dwordx4 {vr(Q+4)}, v3, s[20:23], s48 offen offset:16")
    stamp(40, SV)
    stamp_flush(20, SV, SV-1, 34)
    e("  s_endpgm")
    e("k1_zc:")
    A2 = 16; A1 = 40; FR = 64
    e("  s_and_b32 s25, s24, 3")
    e("  s_lshr_b32 s26, s24, 2")
    e("  s_mul_i32 s30, s29, 5")
    e("  s_min_u32 s48, s29, 3")
    e("  s_add_u32 s30, s30, s48")
    e("  s_cmp_lt_u32 s29, 3")
    e("  s_cselect_b32 s50, 6, 5")
    e("  s_mul_i32 s49, s26, 3")
    e("  s_add_u32 s49, s49, 2")
    e("  s_cmp_lt_u32 s49, s50")
    e("  s_cselect_b32 s57, 1, 0")
    e("  v_and_b32 v15, 7, v13")
    e("  v_xor_b32 v15, v15, v14")
    e("  v_lshlrev_b32 v15, 4, v15")
    e("  v_lshl_add_u32 v15, v13, 7, v15")
    e("  s_lshl_b32 s48, s25, 12")
    e("  v_add_u32 v104, s48, v15")
    e("  v_xor_b32 v105, 64, v104")
    e("  v_bfe_u32 v15, v1, 2, 2")
    e("  v_lshl_add_u32 v15, v14, 3, v15")
    e("  v_mul_u32_u24 v15, 192, v15")
    e("  v_and_b32 v6, 1, v1")
    e("  v_lshl_add_u32 v15, v6, 3, v15")
    e("  v_bfe_u32 v6, v1, 1, 1")
    e("  v_and_b32 v7, 1, v14")
    e("  v_lshlrev_b32 v7, 1, v7")
    e("  s_mul_i32 s48, s26, 6")
    for fb in range(3):
        e(f"  s_add_u32 s49, s48, {2*fb}")
        e(f"  v_add_u32 v8, s49, v6")
        e(f"  v_xor_b32 v8, v8, v7")
        e(f"  v_lshl_add_u32 v8, v8, 4, v15")
        e(f"  v_add_u32 v{106+fb}, 16384, v8")
    for sl in range(1, K1Z_NS):
        for r in range(5):
            e(f"  v_add_u32 v{104+5*sl+r}, {sl*K1Z_STAGE}, v{104+r}")
    for r in range(A2, A2 + 48):
        e(f"  v_mov_b32 v{r}, 0")
    for r in (124, 125): e(f"  v_mov_b32 v{r}, {fx(-GC1)}")
    for r in (126, 127): e(f"  v_mov_b32 v{r}, {fx(-GC0)}")
    for r in (128, 129): e(f"  v_mov_b32 v{r}, 1.0")
    e("  s_lshl_b32 s48, s28, 7")
    e("  s_lshl_b32 s49, s25, 5")
    e("  s_add_u32 s48, s48, s49")
    e("  v_add_u32 v2, s48, v13")
    e("  s_movk_i32 s48, 2752")
    e("  v_mul_lo_u32 v2, v2, s48")
    e("  v_lshl_add_u32 v2, v14, 3, v2")
    e("  s_mul_i32 s49, s26, 3")
    e("  s_add_u32 s49, s49, s30")
    e("  s_lshl_b32 s58, s49, 5")
    e(f"  s_add_u32 s58, s58, {WS_Z}")
    e("  s_lshl_b32 s48, s28, 7")
    e("  s_lshl_b32 s49, s25, 5")
    e("  s_add_u32 s48, s48, s49")
    e("  v_add_u32 v3, s48, v13")
    e("  v_mul_u32_u24 v3, 192, v3")
    e("  v_lshl_add_u32 v3, v14, 3, v3")
    e("  s_mul_i32 s56, s29, 393216")
    e("  s_mul_i32 s49, s26, 96")
    e("  s_add_u32 s56, s56, s49")
    e(f"  s_add_u32 s56, s56, {WS_Z2}")
    def zreads(k, u):
        sl = k % K1Z_NS; st = (k * 2 + u) % 2; b = FR + st * 20
        for fb in range(3):
            for q in range(2):
                e(f"  ds_read_b64_tr_b16 {vr(b+4*fb+2*q,2)}, v{106+5*sl+fb} offset:{u*32*192 + q*768}")
        for tb in range(2):
            e(f"  ds_read_b128 {vr(b+12+4*tb)}, v{104+5*sl+u} offset:{tb*2048}")
    def zmfma(k, u):
        st = (k * 2 + u) % 2; b = FR + st * 20
        AC = A2 if k < 8 else A1
        for fb in range(3):
            for tb in range(2):
                a = AC + (fb * 2 + tb) * 4
                e(f"  v_mfma_f32_16x16x32_bf16 {vr(a)}, {vr(b+4*fb)}, {vr(b+12+4*tb)}, {vr(a)}")
    def cond_fb2(fn):
        l = L("k1z")
        e("  s_cmp_eq_u32 s57, 0")
        e(f"  s_cbranch_scc1 {l}")
        fn()
        e(f"{l}:")
    TMP = 130
    def gelu_fb(AC, fb):
        regs = []
        for tb in range(2):
            a = AC + (fb * 2 + tb) * 4
            regs += [a, a + 2]
        gelu_pk(regs, TMP, 124, 128)
    def store_fb(AC, fb, colofs, norm):
        for tb in range(2):
            a = AC + (fb * 2 + tb) * 4
            if norm:
                for r in range(4):
                    e(f"  v_fma_f32 v{a+r}, v{a+r}, v{140+2*tb}, -v{141+2*tb}")
            e(f"  v_cvt_pk_bf16_f32 v{a}, v{a}, v{a+1}")
            e(f"  v_cvt_pk_bf16_f32 v{a+1}, v{a+2}, v{a+3}")
            if norm:
                e(f"  s_add_u32 s48, s56, {tb*16*192}")
                e(f"  buffer_store_dwordx2 {vr(a,2)}, v3, s[20:23], s48 offen offset:{fb*32}")
            else:
                e(f"  s_add_u32 s48, s58, {colofs + tb*16*2752}")
                e(f"  buffer_store_dwordx2 {vr(a,2)}, v2, s[20:23], s48 offen offset:{fb*32}")
    def stat_fb(fb):
        for tb in range(2):
            a = A2 + (fb * 2 + tb) * 4
            for r in range(4):
                e(f"  v_add_f32 v{140+2*tb}, v{140+2*tb}, v{a+r}")
                e(f"  v_fmac_f32 v{141+2*tb}, v{a+r}, v{a+r}")
    srd(64, 60, 256)
    if "notouch" not in EXP:
        e("  s_cmp_ge_u32 s24, 4")
        e("  s_cbranch_scc1 k1_tw%d" % 1)
        e("  s_lshl_b32 s48, s27, 1")
        e("  s_and_b32 s49, s47, 1")
        e("  s_add_u32 s48, s48, s49")
        e("  s_lshl_b32 s48, s48, 5")
        e("  s_lshl_b32 s49, s24, 3")
        e("  s_add_u32 s48, s48, s49")
        e("  s_lshl_b32 s49, s28, 7")
        e("  s_add_u32 s48, s48, s49")
        e("  s_lshl_b32 s48, s48, 10")
        e("  v_lshrrev_b32 v161, 3, v1")
        e("  v_and_b32 v162, 7, v1")
        e("  v_lshlrev_b32 v162, 7, v162")
        e("  v_lshl_add_u32 v161, v161, 10, v162")
        e("  buffer_load_dword v160, v161, s[12:15], s48 offen")
        e("  s_branch k1_td%d" % 1)
        e("k1_tw%d:" % 1)
        e("  s_and_b32 s48, s28, 7")
        e("  s_lshl_b32 s48, s48, 6")
        e("  v_add_u32 v161, s48, v1")
        srd(16, 8, 512 * 2752)
        e("  s_movk_i32 s49, 2752")
        e("  v_mul_lo_u32 v161, v161, s49")
        e("  s_lshl_b32 s48, s30, 5")
        e("  s_and_b32 s49, s24, 1")
        e("  s_lshl_b32 s49, s49, 7")
        e("  s_add_u32 s48, s48, s49")
        e("  s_cmp_lt_u32 s24, 6")
        e("  s_cselect_b32 s49, 1376, 0")
        e("  s_add_u32 s48, s48, s49")
        e("  buffer_load_dword v160, v161, s[16:19], s48 offen")
        e("  buffer_load_dword v160, v161, s[16:19], s48 offen offset:60")
        e("k1_td1:")
    e("  s_barrier")
    stamp(1, SV)
    zreads(0, 0)
    for k in range(16):
        zreads(k, 1)
        e("  s_waitcnt lgkmcnt(8)")
        zmfma(k, 0)
        e("  s_waitcnt lgkmcnt(0)")
        if k < 15:
            if k < 12: stamp(2 + 2*k, SV)
            e("  s_barrier")
            if k < 12: stamp(3 + 2*k, SV)
            zreads(k + 1, 0)
        zmfma(k, 1)
        if k == 7:
            e("  s_nop 7")
            e("  s_nop 7")
            stamp(30, SV)
            for r in range(140, 144): e(f"  v_mov_b32 v{r}, 0")
            for fb in range(2):
                gelu_fb(A2, fb); stat_fb(fb)
            cond_fb2(lambda: (gelu_fb(A2, 2), stat_fb(2)))
            e("  s_lshl_b32 s48, s26, 12")
            e("  s_lshl_b32 s49, s25, 8")
            e("  s_add_u32 s48, s48, s49")
            e(f"  s_add_u32 s48, s48, {K1Z_ST}")
            e("  v_lshlrev_b32 v4, 10, v14")
            e("  v_lshl_add_u32 v4, v13, 3, v4")
            e("  v_add_u32 v4, s48, v4")
            for tb in range(2):
                e(f"  ds_write_b64 v4, {vr(140+2*tb,2)} offset:{tb*128}")
            e("  s_waitcnt lgkmcnt(0)")
            e("  s_barrier")
            lw = L("k1p")
            e("  s_cmp_ge_u32 s24, 2")
            e(f"  s_cbranch_scc1 {lw}")
            e("  v_lshlrev_b32 v4, 3, v0")
            e(f"  v_add_u32 v4, {K1Z_ST}, v4")
            for t in range(8):
                e(f"  ds_read_b64 {vr(144+2*t,2)}, v4 offset:{t*1024}")
            e("  s_waitcnt lgkmcnt(0)")
            for t in range(1, 8):
                e(f"  v_add_f32 v144, v144, v{144+2*t}")
                e(f"  v_add_f32 v145, v145, v{145+2*t}")
            e("  s_lshl_b32 s48, s28, 7")
            e("  v_add_u32 v4, s48, v0")
            e("  v_lshlrev_b32 v4, 3, v4")
            e("  s_lshl_b32 s48, s29, 14")
            e(f"  s_add_u32 s48, s48, {WS_ST}")
            e("  buffer_store_dwordx2 v[144:145], v4, s[20:23], s48 offen sc1")
            e(f"{lw}:")
            stamp(31, SV)
        if k == 9:
            lw = L("k1p")
            e("  s_cmp_ge_u32 s24, 2")
            e(f"  s_cbranch_scc1 {lw}")
            e("  s_waitcnt vmcnt(0)")
            e("  v_mov_b32 v5, 1")
            e("  v_mov_b32 v6, 0")
            e("  s_lshl_b32 s59, s28, 2")
            e("  s_mov_b64 exec, 1")
            e("  buffer_atomic_add v5, v6, s[64:67], s59 offen sc1")
            e("  s_mov_b64 exec, -1")
            e(f"{lw}:")
        if k == 12:
            lw = L("k1p")
            e("  s_mov_b32 s55, 0")
            e("  s_cmp_ge_u32 s24, 2")
            e(f"  s_cbranch_scc1 {lw}")
            e("  buffer_load_dword v5, v6, s[64:67], s59 offen sc1")
            e(f"{lw}:")
        if k == 14:
            lw = L("k1p")
            e("  s_cmp_ge_u32 s24, 2")
            e(f"  s_cbranch_scc1 {lw}")
            e("  s_waitcnt vmcnt(0)")
            e("  v_readfirstlane_b32 s53, v5")
            e("  s_cmp_ge_u32 s53, 16")
            e(f"  s_cbranch_scc0 {lw}")
            e("  s_mov_b32 s55, 1")
            e("  s_lshl_b32 s48, s28, 7")
            e("  v_add_u32 v4, s48, v0")
            e("  v_lshlrev_b32 v4, 3, v4")
            for pl in range(8):
                e(f"  s_mov_b32 s48, {WS_ST + pl*16384}")
                e(f"  buffer_load_dwordx2 {vr(144+2*pl,2)}, v4, s[20:23], s48 offen sc1")
            e(f"{lw}:")
    e("  s_nop 7")
    e("  s_nop 7")
    stamp(32, SV)
    lq = L("k1q")
    e("  s_cmp_ge_u32 s24, 2")
    e(f"  s_cbranch_scc1 {lq}")
    e("  s_cmp_eq_u32 s55, 1")
    e(f"  s_cbranch_scc1 {lq}")
    e("  v_mov_b32 v6, 0")
    e("  s_lshl_b32 s59, s28, 2")
    e("  s_mov_b32 s52, 0")
    e("k1_poll:")
    e("  buffer_load_dword v5, v6, s[64:67], s59 offen sc1")
    e("  s_waitcnt vmcnt(0)")
    e("  v_readfirstlane_b32 s53, v5")
    e("  s_add_u32 s52, s52, 1")
    e("  s_cmp_ge_u32 s53, 16")
    e("  s_cbranch_scc1 k1_polled")
    e("  s_sleep 1")
    e("  s_cmp_lt_u32 s52, 0x400000")
    e("  s_cbranch_scc1 k1_poll")
    e("k1_polled:")
    e("  s_lshl_b32 s48, s28, 7")
    e("  v_add_u32 v4, s48, v0")
    e("  v_lshlrev_b32 v4, 3, v4")
    for pl in range(8):
        e(f"  s_mov_b32 s48, {WS_ST + pl*16384}")
        e(f"  buffer_load_dwordx2 {vr(144+2*pl,2)}, v4, s[20:23], s48 offen sc1")
    e(f"{lq}:")
    for fb in range(2):
        gelu_fb(A1, fb); store_fb(A1, fb, 0, False)
    cond_fb2(lambda: (gelu_fb(A1, 2), store_fb(A1, 2, 0, False)))
    stamp(33, SV)
    lr = L("k1r")
    e("  s_cmp_ge_u32 s24, 2")
    e(f"  s_cbranch_scc1 {lr}")
    e("  s_waitcnt vmcnt(4)")
    for t in range(1, 8):
        e(f"  v_add_f32 v144, v144, v{144+2*t}")
        e(f"  v_add_f32 v145, v145, v{145+2*t}")
    e(f"  v_mul_f32 v144, {fx(1.0/688)}, v144")
    e(f"  v_mul_f32 v145, {fx(1.0/688)}, v145")
    e("  v_fma_f32 v145, -v144, v144, v145")
    e("  v_max_f32 v145, 0, v145")
    e(f"  v_add_f32 v145, {fx(1e-5)}, v145")
    e("  v_rsq_f32 v146, v145")
    e("  s_nop 0")
    e("  v_mul_f32 v147, v144, v146")
    e("  v_lshlrev_b32 v4, 3, v0")
    e(f"  v_add_u32 v4, {K1Z_ST + 8192}, v4")
    e(f"  ds_write_b64 v4, v[146:147]")
    e("  s_waitcnt lgkmcnt(0)")
    e(f"{lr}:")
    e("  s_barrier")
    stamp(34, SV)
    e("  s_lshl_b32 s48, s25, 8")
    e(f"  s_add_u32 s48, s48, {K1Z_ST + 8192}")
    e("  v_lshlrev_b32 v4, 3, v13")
    e("  v_add_u32 v4, s48, v4")
    for tb in range(2):
        e(f"  ds_read_b64 {vr(140+2*tb,2)}, v4 offset:{tb*128}")
    e("  s_waitcnt lgkmcnt(0)")
    for fb in range(2):
        store_fb(A2, fb, 1376, True)
    cond_fb2(lambda: store_fb(A2, 2, 1376, True))
    stamp(40, SV)
    stamp_flush(20, SV, SV-1, 34)
    e("  s_endpgm")
    e("k1_load:")
    e("  s_sub_u32 s25, s24, 8")
    e("  v_lshrrev_b32 v4, 3, v1")
    e("  v_and_b32 v5, 7, v1")
    e("  v_xor_b32 v5, v5, v4")
    e("  v_lshlrev_b32 v5, 4, v5")
    e("  v_lshl_add_u32 v2, v4, 10, v5")
    e("  s_lshl_b32 s35, s25, 10")
    e("  s_cmp_eq_u32 s27, 0")
    e("  s_cbranch_scc0 k1_lz")
    srd(16, 6, 512 * 3072)
    e("  s_and_b32 s48, s25, 1")
    e("  s_lshl_b32 s48, s48, 2")
    e("  v_lshrrev_b32 v5, 4, v1")
    e("  v_and_b32 v5, 1, v5")
    e("  v_lshlrev_b32 v5, 1, v5")
    e("  v_or_b32 v5, s48, v5")
    e("  v_and_b32 v6, 7, v1")
    e("  v_xor_b32 v5, v5, v6")
    e("  v_lshlrev_b32 v5, 4, v5")
    e("  v_mul_u32_u24 v3, 3072, v4")
    e("  v_add_u32 v3, v3, v5")
    e(f"  s_mul_i32 s36, s25, {8*3072}")
    e("  s_lshl_b32 s48, s29, 7")
    e("  s_add_u32 s36, s36, s48")
    e("  s_lshl_b32 s48, s28, 17")
    e("  s_lshl_b32 s49, s25, 13")
    e("  s_add_u32 s32, s48, s49")
    e("  s_sub_u32 s32, s32, 16384")
    e("  s_cmp_lt_i32 s32, 0")
    e("  s_cselect_b32 s33, 0, s32")
    e("  s_cmp_lt_u32 s25, 2")
    e("  s_cselect_b32 s43, 1, 0")
    q = []
    def qissue(k):
        sb = (k % 3) * K1_STAGE
        for j in range(3):
            for ii in range(2):
                e(f"  s_add_u32 m0, s35, {sb + 18432 + j*8192 + ii*4096}")
                e(f"  s_add_u32 s42, s36, {k*64*3072 + j*1024 + ii*32*3072}")
                e("  buffer_load_dwordx4 v3, s[16:19], s42 offen lds"); q.append(k)
        for m in range(4):
            e(f"  s_add_u32 m0, s35, {sb + m*4096}")
            e(f"  s_add_u32 s42, s{33 if m == 0 else 32}, {k*128 + m*32*1024}")
            e("  buffer_load_dwordx4 v2, s[12:15], s42 offen lds"); q.append(k)
        l = L("k1h")
        e("  s_cmp_eq_u32 s43, 0")
        e(f"  s_cbranch_scc1 {l}")
        e(f"  s_add_u32 m0, s35, {sb + 16384}")
        e(f"  s_add_u32 s42, s32, {k*128 + 128*1024}")
        e("  buffer_load_dwordx4 v2, s[12:15], s42 offen lds")
        e(f"{l}:")
    def wait_for(k):
        idx = max(i for i, o in enumerate(q) if o == k)
        e(f"  s_waitcnt vmcnt({min(63, len(q) - 1 - idx)})")
    def gate_load(qq):
        srd(52, 10, 1024)
        e("  s_lshl_b32 s74, s2, 3")
        e("  s_lshl_b32 s49, s25, 1")
        e("  s_add_u32 s74, s74, s49")
        e("  s_lshl_b32 s49, s74, 10")
        e("  v_lshlrev_b32 v8, 4, v1")
        e("  buffer_load_dwordx4 v[140:143], v8, s[12:15], s49 offen")
        e("  buffer_load_dwordx4 v[148:151], v8, s[12:15], s49 offen offset:1024")
        e("  buffer_load_dwordx4 v[144:147], v8, s[52:55], 0 offen")
        qq += ["g", "g", "g"]
    def gate(qq):
        for rr in range(2):
            e(f"  v_mov_b32 v{152+rr}, 0")
            for i in range(4):
                e(f"  v_dot2c_f32_bf16 v{152+rr}, v{140+8*rr+i}, v{144+i}")
        e("  s_nop 3")
        for sh in (8, 4, 2, 1):
            for rr in range(2):
                e(f"  v_add_f32_dpp v{152+rr}, v{152+rr}, v{152+rr} row_ror:{sh} row_mask:0xf bank_mask:0xf")
            e("  s_nop 1")
        for rr in range(2):
            e(f"  v_readlane_b32 s70, v{152+rr}, 0")
            e(f"  v_readlane_b32 s71, v{152+rr}, 16")
            e(f"  v_readlane_b32 s72, v{152+rr}, 32")
            e(f"  v_readlane_b32 s73, v{152+rr}, 48")
            e("  s_nop 1")
            e(f"  v_mov_b32 v{154+rr}, s70")
            e(f"  v_add_f32 v{154+rr}, s71, v{154+rr}")
            e(f"  v_add_f32 v{154+rr}, s72, v{154+rr}")
            e(f"  v_add_f32 v{154+rr}, s73, v{154+rr}")
            e(f"  v_mul_f32 v{154+rr}, {fx(-LOG2E)}, v{154+rr}")
            e(f"  v_exp_f32 v{154+rr}, v{154+rr}")
            e("  s_nop 0")
            e(f"  v_add_f32 v{154+rr}, 1.0, v{154+rr}")
            e(f"  v_rcp_f32 v{154+rr}, v{154+rr}")
        e("  s_lshl_b32 s48, s74, 2")
        e(f"  s_add_u32 s48, s48, {WS_G}")
        e("  v_mov_b32 v9, 0")
        e("  s_mov_b64 exec, 1")
        e("  buffer_store_dwordx2 v[154:155], v9, s[20:23], s48 offen")
        e("  s_mov_b64 exec, -1")
        qq.append("g")
    stamp(1, SV)
    for k in range(2):
        qissue(k); stamp(2 + k, SV)
    stamp(5, SV)
    for k in range(8):
        wait_for(k)
        stamp(6 + 3*k, SV)
        e("  s_barrier")
        stamp(7 + 3*k, SV)
        if k + 2 < 8: qissue(k + 2)
        if k == 0: gate_load(q)
        if k == 4: gate(q)
        stamp(8 + 3*k, SV)
    stamp_flush(20, SV, SV-1, 34)
    e("  s_endpgm")
    e("k1_lz:")
    srd(16, 8, 512 * 2752)
    for p in range(3):
        e(f"  v_add_u32 v6, {64*p}, v1")
        e("  v_mul_u32_u24 v3, 0x5556, v6")
        e("  v_lshrrev_b32 v3, 18, v3")
        e("  v_mul_u32_u24 v4, 12, v3")
        e("  v_sub_u32 v4, v6, v4")
        e("  v_bfe_u32 v5, v3, 3, 1")
        e("  v_lshlrev_b32 v5, 1, v5")
        e("  v_xor_b32 v4, v4, v5")
        e("  s_movk_i32 s48, 2752")
        e("  v_mul_lo_u32 v3, v3, s48")
        e(f"  v_lshl_add_u32 v{20+p}, v4, 4, v3")
    e("  s_mul_i32 s30, s29, 5")
    e("  s_min_u32 s48, s29, 3")
    e("  s_add_u32 s30, s30, s48")
    e("  s_lshl_b32 s48, s30, 5")
    e(f"  s_mul_i32 s49, s25, {16*2752}")
    e("  s_add_u32 s36, s48, s49")
    e("  s_mul_i32 s37, s25, 3072")
    e("  s_add_u32 s37, s37, 16384")
    e("  s_lshl_b32 s48, s28, 17")
    e("  s_lshl_b32 s49, s25, 13")
    e("  s_add_u32 s32, s48, s49")
    q2 = []
    def zissue(s_):
        sb = (s_ % K1Z_NS) * K1Z_STAGE
        k = s_ & 7
        co = 1376 if s_ < 8 else 0
        for p in range(3):
            e(f"  s_add_u32 m0, s37, {sb + p*1024}")
            e(f"  s_add_u32 s42, s36, {k*64*2752 + co}")
            e(f"  buffer_load_dwordx4 v{20+p}, s[16:19], s42 offen lds"); q2.append(s_)
        for m in range(4):
            e(f"  s_add_u32 m0, s35, {sb + m*4096}")
            e(f"  s_add_u32 s42, s32, {k*128 + m*32*1024}")
            e("  buffer_load_dwordx4 v2, s[12:15], s42 offen lds"); q2.append(s_)
    def wait2(k):
        idx = max(i for i, o in enumerate(q2) if o == k)
        e(f"  s_waitcnt vmcnt({min(63, len(q2) - 1 - idx)})")
    for k in range(2): zissue(k)
    for k in range(16):
        wait2(k)
        e("  s_barrier")
        if k == 0:
            zissue(2); zissue(3); gate_load(q2)
        if k >= 1 and k - 1 + K1Z_NS < 16: zissue(k - 1 + K1Z_NS)
        if k == 5: gate(q2)
        if k == 8:
            e("  s_barrier")
    e("k1_end:")
    e("  s_endpgm")
    return kd(name, 168)

K2_NS = 8
K2_ZOFF = K2_NS * 8192
K2_LDS = K2_ZOFF + K2_NS * 12288
K2_NIT = 32
def sched(n, ns, issue, wait, bar, extra=None, burst=2, lag=1):
    nxt = 0
    for k in range(min(2, n)):
        issue(k); nxt = k + 1
    for k in range(n):
        wait(k)
        bar(k)
        lim = min(n, k - 1 + ns + (1 if k == 0 else 0))
        lim = min(n, max(k - 1, -1) + ns + 1) if k == 0 else min(n, k - 1 + ns + 0)
        c = 0
        while nxt < n and nxt <= max(k - lag, -1) + ns and c < burst:
            issue(nxt); nxt += 1; c += 1
        if extra: extra(k)

def gen_k2():
    name = "k2_kernel"
    kernel_begin(name)
    e("  s_cmp_ge_u32 s2, 256")
    e("  s_cbranch_scc1 k2_end")
    if STAMP: e("  v_mov_b32 v126, 0")
    stamp(0, 126)
    e("  s_load_dwordx4 s[4:7], s[0:1], 40")
    e("  s_load_dwordx2 s[8:9], s[0:1], 88")
    e("  v_and_b32 v1, 63, v0")
    e("  v_lshrrev_b32 v2, 6, v0")
    e("  s_nop 0")
    e("  v_readfirstlane_b32 s24, v2")
    e("  s_and_b32 s46, s2, 7")
    e("  s_lshr_b32 s47, s2, 3")
    e("  s_lshr_b32 s28, s46, 1")
    e("  s_lshl_b32 s28, s28, 3")
    e("  s_lshr_b32 s48, s47, 2")
    e("  s_add_u32 s28, s28, s48")
    e("  s_and_b32 s29, s46, 1")
    e("  s_lshl_b32 s29, s29, 2")
    e("  s_and_b32 s48, s47, 3")
    e("  s_add_u32 s29, s29, s48")
    e("  s_mul_i32 s30, s29, 5")
    e("  s_min_u32 s48, s29, 3")
    e("  s_add_u32 s30, s30, s48")
    e("  s_waitcnt lgkmcnt(0)")
    srd(12, 4, 2048 * 4096)
    srd(16, 6, 4096)
    srd(20, 8, WS_SIZE)
    e("  s_cmp_ge_u32 s24, 4")
    e("  s_cbranch_scc1 k2_prod")
    e("  s_and_b32 s25, s24, 1")
    e("  s_lshr_b32 s26, s24, 1")
    e("  v_and_b32 v13, 15, v1")
    e("  v_lshrrev_b32 v14, 4, v1")
    ACC = 16
    FR = 40
    e("  v_and_b32 v15, 7, v13")
    e("  v_xor_b32 v15, v15, v14")
    e("  v_lshlrev_b32 v15, 4, v15")
    e("  v_lshl_add_u32 v15, v13, 7, v15")
    e("  s_lshl_b32 s48, s26, 12")
    e("  v_add_u32 v122, s48, v15")
    e("  v_xor_b32 v123, 64, v122")
    e("  v_bfe_u32 v15, v1, 2, 2")
    e("  v_lshl_add_u32 v15, v14, 3, v15")
    e("  v_mul_u32_u24 v15, 192, v15")
    e("  v_and_b32 v6, 1, v1")
    e("  v_lshl_add_u32 v15, v6, 3, v15")
    e("  v_bfe_u32 v6, v1, 1, 1")
    e("  v_and_b32 v7, 1, v14")
    e("  v_lshlrev_b32 v7, 1, v7")
    e("  s_mul_i32 s48, s25, 6")
    for fb in range(3):
        e(f"  s_add_u32 s49, s48, {2*fb}")
        e(f"  v_add_u32 v8, s49, v6")
        e(f"  v_xor_b32 v8, v8, v7")
        e(f"  v_lshl_add_u32 v8, v8, 4, v15")
        e(f"  v_add_u32 v{2+fb}, {K2_ZOFF}, v8")
        e(f"  v_add_u32 v{9+fb}, {K2_ZOFF + 4*12288}, v8")
    for r in range(ACC, ACC + 24):
        e(f"  v_mov_b32 v{r}, 0")
    e("  s_lshl_b32 s48, s28, 6")
    e("  s_lshl_b32 s49, s26, 5")
    e("  s_add_u32 s48, s48, s49")
    e("  v_add_u32 v104, s48, v13")
    e("  v_lshlrev_b32 v105, 1, v104")
    e("  s_movk_i32 s48, 2752")
    e("  v_mul_lo_u32 v106, v104, s48")
    e("  v_lshl_add_u32 v106, v14, 3, v106")
    e("  s_mul_i32 s49, s25, 3")
    e("  s_add_u32 s49, s49, s30")
    e("  s_lshl_b32 s31, s49, 5")
    e(f"  s_add_u32 s51, s31, {WS_Z}")
    def epi_prefetch():
        e("  buffer_load_ushort v120, v105, s[16:19], 0 offen")
        e("  buffer_load_ushort v121, v105, s[16:19], 0 offen offset:32")
        for tb in range(2):
            for fb in range(3):
                e(f"  s_add_u32 s49, s51, {tb*16*2752}")
                e(f"  buffer_load_dwordx2 {vr(108+2*(tb*3+fb),2)}, v106, s[20:23], s49 offen offset:{fb*32}")
    def rd_list(k, u):
        sl = k % K2_NS; st = (k * 2 + u) % 3; b = FR + st * 20
        zb = 2 if sl < 4 else 9
        o = []
        for fb in range(3):
            for q in range(2):
                o.append(f"  ds_read_b64_tr_b16 {vr(b+4*fb+2*q,2)}, v{zb+fb} offset:{(sl%4)*12288 + u*32*192 + q*768}")
        for tb in range(2):
            o.append(f"  ds_read_b128 {vr(b+12+4*tb)}, v{122+u} offset:{sl*8192 + tb*2048}")
        return o
    def mf_list(k, u):
        st = (k * 2 + u) % 3; b = FR + st * 20
        o = []
        for fb in range(3):
            for tb in range(2):
                a = ACC + (fb * 2 + tb) * 4
                o.append(f"  v_mfma_f32_16x16x32_bf16 {vr(a)}, {vr(b+4*fb)}, {vr(b+12+4*tb)}, {vr(a)}")
        return o
    def interleave(ms, rs):
        ri = 0
        for i, m in enumerate(ms):
            e(m)
            take = (len(rs) - ri + (len(ms) - i) - 1) // (len(ms) - i)
            for _ in range(take):
                e(rs[ri]); ri += 1
    e("  s_barrier")
    stamp(1, 126)
    for r in rd_list(0, 0) + rd_list(0, 1): e(r)
    for k in range(K2_NIT):
        if k == 8: epi_prefetch()
        if k + 1 < K2_NIT:
            if k < 24: stamp(2 + 2*k, 126)
            e("  s_barrier")
            if k < 24: stamp(3 + 2*k, 126)
        for u in range(2):
            nx = rd_list(k + 1, u) if k + 1 < K2_NIT else []
            e(f"  s_waitcnt lgkmcnt({8 if (k + 1 < K2_NIT or u == 0) else 0})")
            interleave(mf_list(k, u), nx)
    e("  s_waitcnt vmcnt(0)")
    e("  s_nop 7")
    e("  v_lshlrev_b32 v120, 16, v120")
    e("  v_lshlrev_b32 v121, 16, v121")
    e("  s_movk_i32 s48, 1408")
    e("  v_mul_lo_u32 v105, v104, s48")
    e("  v_lshl_add_u32 v105, v14, 3, v105")
    e(f"  s_add_u32 s31, s31, {WS_U}")
    e("  s_cmp_lt_u32 s29, 3")
    e("  s_cselect_b32 s50, 6, 5")
    for fb in range(3):
        lskip = L("k2e")
        if fb == 2:
            e("  s_mul_i32 s49, s25, 3")
            e("  s_add_u32 s49, s49, 2")
            e("  s_cmp_lt_u32 s49, s50")
            lval = L("k2v")
            e(f"  s_cbranch_scc1 {lval}")
            e("  s_cmp_eq_u32 s29, 7")
            e(f"  s_cbranch_scc0 {lskip}")
            for tb in range(2):
                a = ACC + (fb * 2 + tb) * 4
                e(f"  v_mov_b32 v{a}, 0")
                e(f"  v_mov_b32 v{a+1}, 0")
                e(f"  s_add_u32 s49, s31, {tb*16*1408}")
                e(f"  buffer_store_dwordx2 {vr(a,2)}, v105, s[20:23], s49 offen offset:{fb*32}")
            e(f"  s_branch {lskip}")
            e(f"{lval}:")
        for tb in range(2):
            a = ACC + (fb * 2 + tb) * 4
            z = 108 + 2 * (tb * 3 + fb)
            e(f"  v_lshlrev_b32 v60, 16, v{z}")
            e(f"  v_and_b32 v61, 0xffff0000, v{z}")
            e(f"  v_lshlrev_b32 v62, 16, v{z+1}")
            e(f"  v_and_b32 v63, 0xffff0000, v{z+1}")
            for r in range(4):
                e(f"  v_add_f32 v{a+r}, v{a+r}, v{120+tb}")
            for r in range(4):
                e(f"  v_mul_f32 v{a+r}, v{a+r}, v{60+r}")
            e(f"  v_cvt_pk_bf16_f32 v{a}, v{a}, v{a+1}")
            e(f"  v_cvt_pk_bf16_f32 v{a+1}, v{a+2}, v{a+3}")
            e(f"  s_add_u32 s49, s31, {tb*16*1408}")
            e(f"  buffer_store_dwordx2 {vr(a,2)}, v105, s[20:23], s49 offen offset:{fb*32}")
        e(f"{lskip}:")
    stamp(60, 126)
    stamp_flush(20, 126, 124, 33)
    e("  s_endpgm")
    e("k2_prod:")
    e("  s_sub_u32 s25, s24, 4")
    e("  v_lshrrev_b32 v10, 3, v1")
    e("  v_and_b32 v11, 7, v1")
    e("  v_xor_b32 v11, v11, v10")
    e("  v_lshlrev_b32 v11, 4, v11")
    e("  v_lshl_add_u32 v10, v10, 12, v11")
    e("  s_lshl_b32 s48, s28, 18")
    e("  s_lshl_b32 s49, s25, 15")
    e("  s_add_u32 s33, s48, s49")
    e("  s_lshl_b32 s35, s25, 10")
    for p in range(3):
        e(f"  v_add_u32 v2, {64*p}, v1")
        e("  v_mul_u32_u24 v3, 0x5556, v2")
        e("  v_lshrrev_b32 v3, 18, v3")
        e("  v_mul_u32_u24 v4, 12, v3")
        e("  v_sub_u32 v4, v2, v4")
        e("  v_bfe_u32 v5, v3, 3, 1")
        e("  v_lshlrev_b32 v5, 1, v5")
        e("  v_xor_b32 v4, v4, v5")
        e("  v_mul_u32_u24 v3, 192, v3")
        e(f"  v_lshl_add_u32 v{20+p}, v4, 4, v3")
    e("  s_mul_i32 s48, s29, 393216")
    e(f"  s_mul_i32 s49, s25, {16*192}")
    e("  s_add_u32 s32, s48, s49")
    e(f"  s_add_u32 s32, s32, {WS_Z2}")
    e("  s_mul_i32 s36, s25, 3072")
    e(f"  s_add_u32 s36, s36, {K2_ZOFF}")
    q = []
    def dma(k):
        sl = k % K2_NS
        for m in range(3):
            if "k2noz" in EXP: continue
            e(f"  s_add_u32 m0, s36, {sl*12288 + m*1024}")
            e(f"  s_add_u32 s42, s32, {k*64*192}")
            e(f"  buffer_load_dwordx4 v{20 + m}, s[20:23], s42 offen lds")
            q.append(k)
        for ii in range(2):
            if "k2now" in EXP: continue
            e(f"  s_add_u32 m0, s35, {sl*8192 + ii*4096}")
            e(f"  s_add_u32 s42, s33, {k*128 + ii*32*4096}")
            e("  buffer_load_dwordx4 v10, s[12:15], s42 offen lds")
            q.append(k)
    def wait_for(k):
        idx = max(i for i, o in enumerate(q) if o == k)
        e(f"  s_waitcnt vmcnt({min(63, len(q) - 1 - idx)})")
    def bar(k):
        if k < 24: stamp(2 + 2*k, 126)
        e("  s_barrier")
        if k < 24: stamp(3 + 2*k, 126)
    sched(K2_NIT, K2_NS, dma, wait_for, bar, lag=2)
    stamp(62, 126)
    stamp_flush(20, 126, 124, 33)
    e("k2_end:")
    e("  s_endpgm")
    return kd(name, 128)

K3_NS = 8
K3_LDS = K3_NS * 16384
def interleave(ms, rs):
    ri = 0
    for i, m in enumerate(ms):
        e(m)
        take = (len(rs) - ri + (len(ms) - i) - 1) // (len(ms) - i)
        for _ in range(take):
            e(rs[ri]); ri += 1
def gen_k3():
    name = NAME + "_kernel"
    NK = 19
    kernel_begin(name)
    e("  s_cmp_ge_u32 s2, 256")
    e("  s_cbranch_scc1 k3_end")
    if STAMP: e("  v_mov_b32 v127, 0")
    stamp(0)
    e("  s_load_dwordx2 s[4:5], s[0:1], 16")
    e("  s_load_dwordx2 s[6:7], s[0:1], 56")
    e("  s_load_dwordx2 s[8:9], s[0:1], 72")
    e("  s_load_dwordx2 s[10:11], s[0:1], 88")
    e("  v_and_b32 v1, 63, v0")
    e("  v_lshrrev_b32 v2, 6, v0")
    e("  s_nop 0")
    e("  v_readfirstlane_b32 s24, v2")
    e("  s_and_b32 s46, s2, 7")
    e("  s_lshr_b32 s47, s2, 3")
    e("  s_lshr_b32 s28, s46, 1")
    e("  s_lshl_b32 s28, s28, 3")
    e("  s_lshr_b32 s48, s47, 2")
    e("  s_add_u32 s28, s28, s48")
    e("  s_and_b32 s29, s46, 1")
    e("  s_lshl_b32 s29, s29, 2")
    e("  s_and_b32 s48, s47, 3")
    e("  s_add_u32 s29, s29, s48")
    e("  v_and_b32 v13, 15, v1")
    e("  v_lshrrev_b32 v14, 4, v1")
    e("  s_waitcnt lgkmcnt(0)")
    srd(20, 10, WS_SIZE)
    e("  s_cmp_ge_u32 s24, 4")
    e("  s_cbranch_scc1 k3_load")
    srd(52, 8, 2048 * 1024)
    e("  s_and_b32 s25, s24, 1")
    e("  s_lshr_b32 s26, s24, 1")
    ACA = 16; ACB = 32; FR = 48
    e("  v_and_b32 v6, 7, v13")
    e("  v_xor_b32 v6, v6, v14")
    e("  v_lshlrev_b32 v6, 4, v6")
    e("  v_lshl_add_u32 v6, v13, 7, v6")
    e("  s_lshl_b32 s48, s26, 12")
    e("  v_add_u32 v4, s48, v6")
    e("  v_xor_b32 v5, 64, v4")
    e("  v_add_u32 v2, 65536, v4")
    e("  v_add_u32 v3, 65536, v5")
    e("  v_bfe_u32 v6, v1, 2, 2")
    e("  v_and_b32 v7, 1, v14")
    e("  v_lshlrev_b32 v7, 1, v7")
    e("  v_lshrrev_b32 v8, 1, v6")
    e("  v_or_b32 v7, v7, v8")
    e("  v_lshlrev_b32 v7, 1, v7")
    e("  v_bfe_u32 v8, v1, 1, 1")
    e("  v_lshlrev_b32 v9, 10, v14")
    e("  v_lshl_add_u32 v9, v6, 7, v9")
    e("  v_and_b32 v6, 1, v1")
    e("  v_lshl_add_u32 v9, v6, 3, v9")
    e("  s_lshl_b32 s48, s25, 2")
    for nb in range(2):
        e(f"  s_add_u32 s49, s48, {2*nb}")
        e("  v_add_u32 v6, s49, v8")
        e("  v_xor_b32 v6, v6, v7")
        e(f"  v_lshl_add_u32 v{10+nb}, v6, 4, v9")
        e(f"  v_add_u32 v{100+nb}, 65536, v{10+nb}")
    for r in range(16, 48):
        e(f"  v_mov_b32 v{r}, 0")
    e("  s_lshl_b32 s48, s28, 6")
    e("  s_lshl_b32 s49, s26, 5")
    e("  s_add_u32 s48, s48, s49")
    e("  v_add_u32 v104, s48, v13")
    e("  v_lshlrev_b32 v105, 2, v104")
    def rd_list(k, u):
        sl = k % K3_NS; st = (k * 2 + u) % 3; b = FR + st * 16
        so = (sl % 4) * 16384
        wa = 10 if sl < 4 else 100
        ta = 4 if sl < 4 else 2
        o = []
        for nb in range(2):
            for q in range(2):
                o.append(f"  ds_read_b64_tr_b16 {vr(b+4*nb+2*q,2)}, v{wa+nb} offset:{so + 8192 + u*4096 + q*512}")
        for tb in range(2):
            o.append(f"  ds_read_b128 {vr(b+8+4*tb)}, v{ta+u} offset:{so + tb*2048}")
        return o
    def mf_list(k, u):
        st = (k * 2 + u) % 3; b = FR + st * 16
        AC = ACA if k < 8 else ACB
        o = []
        for nb in range(2):
            for tb in range(2):
                a = AC + (nb * 2 + tb) * 4
                o.append(f"  v_mfma_f32_16x16x32_bf16 {vr(a)}, {vr(b+4*nb)}, {vr(b+8+4*tb)}, {vr(a)}")
        return o
    e("  s_barrier")
    stamp(1)
    for r in rd_list(0, 0) + rd_list(0, 1): e(r)
    for k in range(NK):
        if k == 4:
            e(f"  s_mov_b32 s48, {WS_G}")
            e("  buffer_load_dword v120, v105, s[20:23], s48 offen")
            e("  buffer_load_dword v121, v105, s[20:23], s48 offen offset:64")
        if k + 1 < NK:
            stamp(2 + 2*k)
            e("  s_barrier")
            stamp(3 + 2*k)
        for u in range(2):
            nx = rd_list(k + 1, u) if k + 1 < NK else []
            e(f"  s_waitcnt lgkmcnt({6 if (k + 1 < NK or u == 0) else 0})")
            interleave(mf_list(k, u), nx)
    e("  s_waitcnt vmcnt(0)")
    e("  s_nop 7")
    e("  v_sub_f32 v122, 1.0, v120")
    e("  v_sub_f32 v123, 1.0, v121")
    e("  v_lshlrev_b32 v105, 10, v104")
    e("  v_lshl_add_u32 v105, v14, 3, v105")
    e("  s_lshl_b32 s48, s29, 7")
    e("  s_lshl_b32 s49, s25, 6")
    e("  s_add_u32 s48, s48, s49")
    for nb in range(2):
        for tb in range(2):
            a = ACA + (nb * 2 + tb) * 4
            b = ACB + (nb * 2 + tb) * 4
            for r in range(4):
                e(f"  v_mul_f32 v{a+r}, v{a+r}, v{120+tb}")
            for r in range(4):
                e(f"  v_fmac_f32 v{a+r}, v{b+r}, v{122+tb}")
            e(f"  v_cvt_pk_bf16_f32 v{a}, v{a}, v{a+1}")
            e(f"  v_cvt_pk_bf16_f32 v{a+1}, v{a+2}, v{a+3}")
            e(f"  s_add_u32 s49, s48, {tb*16*1024}")
            e(f"  buffer_store_dwordx2 {vr(a,2)}, v105, s[52:55], s49 offen offset:{nb*32}")
    stamp(60)
    stamp_flush(20)
    e("  s_endpgm")
    e("k3_load:")
    srd(12, 4, 512 * 1024)
    srd(16, 6, 688 * 1024)
    e("  s_sub_u32 s25, s24, 4")
    e("  v_lshrrev_b32 v4, 3, v1")
    e("  v_and_b32 v5, 7, v1")
    e("  v_xor_b32 v5, v5, v4")
    e("  v_lshlrev_b32 v5, 4, v5")
    e("  v_lshl_add_u32 v2, v4, 10, v5")
    e("  v_mul_u32_u24 v3, 1408, v4")
    e("  v_add_u32 v3, v3, v5")
    e("  s_and_b32 s48, s25, 1")
    e("  s_lshl_b32 s48, s48, 2")
    e("  v_lshrrev_b32 v5, 4, v1")
    e("  v_and_b32 v5, 1, v5")
    e("  v_lshlrev_b32 v5, 1, v5")
    e("  v_or_b32 v5, s48, v5")
    e("  v_and_b32 v6, 7, v1")
    e("  v_xor_b32 v5, v5, v6")
    e("  v_lshlrev_b32 v5, 4, v5")
    e("  v_lshl_add_u32 v15, v4, 10, v5")
    e("  s_lshl_b32 s48, s28, 6")
    e("  s_lshl_b32 s49, s25, 3")
    e("  s_add_u32 s48, s48, s49")
    e("  s_lshl_b32 s32, s48, 10")
    e(f"  s_add_u32 s32, s32, {WS_O}")
    e("  s_mul_i32 s33, s48, 1408")
    e(f"  s_add_u32 s33, s33, {WS_U}")
    e("  s_lshl_b32 s34, s25, 13")
    e("  s_lshl_b32 s48, s29, 7")
    e("  s_add_u32 s34, s34, s48")
    e("  s_lshl_b32 s35, s25, 10")
    q = []
    def issue(k):
        so = (k % K3_NS) * 16384
        for hf in range(2):
            e(f"  s_add_u32 m0, s35, {so + hf*4096}")
            if k < 8:
                e(f"  s_add_u32 s42, s32, {k*128 + hf*32*1024}")
                e("  buffer_load_dwordx4 v2, s[20:23], s42 offen lds")
            else:
                e(f"  s_add_u32 s42, s33, {(k-8)*128 + hf*32*1408}")
                e("  buffer_load_dwordx4 v3, s[20:23], s42 offen lds")
            q.append(k)
        for hf in range(2):
            e(f"  s_add_u32 m0, s35, {so + 8192 + hf*4096}")
            kk = k if k < 8 else k - 8
            e(f"  s_add_u32 s42, s34, {kk*65536 + hf*32*1024}")
            e(f"  buffer_load_dwordx4 v15, s[{12 if k < 8 else 16}:{15 if k < 8 else 19}], s42 offen lds")
            q.append(k)
    def wait_for(k):
        idx = max(i for i, o in enumerate(q) if o == k)
        e(f"  s_waitcnt vmcnt({min(63, len(q) - 1 - idx)})")
    def bar(k):
        e("  s_barrier")
    sched(NK, K3_NS, issue, wait_for, bar, lag=2)
    e("k3_end:")
    e("  s_endpgm")
    return kd(name, 128)

def header(launches):
    ref = open("cdna_kernels/%s.s.ref" % NAME).read().splitlines()
    for l in ref:
        if l.startswith("; @launch") or not l.startswith(";"): break
        if "Override launch" in l or "grid=ceil" in l: continue
        e(l)
    for l in launches: e(l)
    e('.amdgcn_target "amdgcn-amd-amdhsa--gfx950"')
    e(".text")

if __name__ == "__main__":
    which = sys.argv[1] if len(sys.argv) > 1 else "all"
    launches = [f"; @launch kernel=k1_kernel grid=(256,1,1) block=(768,1,1) lds={K1_LDS}",
                f"; @launch kernel=k2_kernel grid=(256,1,1) block=(512,1,1) lds={K2_LDS}",
                f"; @launch kernel={NAME}_kernel grid=(256,1,1) block=(512,1,1) lds={K3_LDS}"]
    header(launches)
    kds = [gen_k1(), gen_k2(), gen_k3()]
    e('.section .rodata,"a"')
    for k in kds:
        e(".p2align 6")
        e(k)
    dst = sys.argv[2] if len(sys.argv) > 2 else "k.s"
    open(dst, "w").write("\n".join(out) + "\n")
    print("wrote", dst, len(out), "lines")
```

```python
import sys, struct, os
EXP = os.environ.get("EXP", "")
PF0 = int(os.environ.get("PF0", "1"))
PFZ = int(os.environ.get("PFZ", "1"))
PK = int(os.environ.get("PK", "14"))
PA = int(os.environ.get("PA", "10"))
NAME = "gated_mix__sliding_local_dilated__mixer_gmlp__prompt"
out = []
def e(s=""): out.append(s)
_lbl = [0]
def L(p="L"):
    _lbl[0] += 1
    return f"{p}_{_lbl[0]}"
def f2u(x): return struct.unpack("<I", struct.pack("<f", x))[0]
def fx(x): return "0x%08x" % f2u(x)

WS_Z = 0
WS_O = 8 << 20
WS_U = 12 << 20
WS_ST = 16 << 20
WS_G = 17 << 20
WS_Z2 = 20 << 20
WS_Z1 = 24 << 20
WS_SIZE = 268435456
LOG2E = 1.4426950408889634
GC0 = 2 * 0.7978845608028654 * LOG2E
GC1 = GC0 * 0.044715

def srd(s, base, size):
    e(f"  s_mov_b32 s{s}, s{base}")
    e(f"  s_and_b32 s{s+1}, s{base+1}, 0xffff")
    e(f"  s_mov_b32 s{s+2}, {size}")
    e(f"  s_mov_b32 s{s+3}, 0x00020000")

def kernel_begin(name):
    e(f".globl {name}")
    e(".p2align 8")
    e(f".type {name},@function")
    e(f"{name}:")

def kd(name, vgpr, sgpr=96):
    v = (vgpr + 7) // 8 * 8
    return f""".amdhsa_kernel {name}
  .amdhsa_next_free_vgpr {v}
  .amdhsa_next_free_sgpr {sgpr}
  .amdhsa_accum_offset {v}
  .amdhsa_group_segment_fixed_size 0
  .amdhsa_kernarg_size 96
  .amdhsa_user_sgpr_count 2
  .amdhsa_user_sgpr_kernarg_segment_ptr 1
  .amdhsa_system_sgpr_workgroup_id_x 1
.end_amdhsa_kernel"""

STAMP = "stamp" in EXP
def stamp(i, vreg=127):
    if not STAMP: return
    e("  s_memtime s[90:91]")
    e("  s_waitcnt lgkmcnt(0)")
    e(f"  v_writelane_b32 v{vreg}, s90, {i}")
def rstamp(i, vreg):
    if not STAMP: return
    e("  s_memrealtime s[90:91]")
    e("  s_waitcnt lgkmcnt(0)")
    e(f"  v_writelane_b32 v{vreg}, s90, {i}")
def stamp_flush(srd, vreg=127, tmp=126, mb=32):
    if not STAMP: return
    rstamp(63, vreg)
    e("  s_lshl_b32 s90, s2, 4")
    e("  s_add_u32 s90, s90, s24")
    e("  s_lshl_b32 s90, s90, 8")
    e(f"  s_add_u32 s90, s90, {mb<<20}")
    e(f"  v_and_b32 v{tmp}, 63, v0")
    e(f"  v_lshlrev_b32 v{tmp}, 2, v{tmp}")
    e(f"  buffer_store_dword v{vreg}, v{tmp}, s[{srd}:{srd+3}], s90 offen")

def vr(b, n=4): return f"v[{b}:{b+n-1}]"

K1_STAGE = 43008
K1Z_STAGE = 16384 + 12288
K1Z_NS = 4
K1Z_ST = K1Z_NS * K1Z_STAGE
K1_LDS = 3 * K1_STAGE
SV = 163

def gelu_pk(regs, tmp, vc1, vone):
    n = len(regs)
    for i, r in enumerate(regs):
        e(f"  v_pk_mul_f32 {vr(tmp+2*i,2)}, {vr(r,2)}, {vr(r,2)}")
    for i, r in enumerate(regs):
        e(f"  v_pk_fma_f32 {vr(tmp+2*i,2)}, {vr(tmp+2*i,2)}, {vr(vc1,2)}, {vr(vc1+2,2)}")
    for i, r in enumerate(regs):
        e(f"  v_pk_mul_f32 {vr(tmp+2*i,2)}, {vr(tmp+2*i,2)}, {vr(r,2)}")
    for i in range(2 * n):
        e(f"  v_exp_f32 v{tmp+i}, v{tmp+i}")
    e("  s_nop 0")
    for i, r in enumerate(regs):
        e(f"  v_pk_add_f32 {vr(tmp+2*i,2)}, {vr(tmp+2*i,2)}, {vr(vone,2)}")
    for i in range(2 * n):
        e(f"  v_rcp_f32 v{tmp+i}, v{tmp+i}")
    e("  s_nop 0")
    for i, r in enumerate(regs):
        e(f"  v_pk_mul_f32 {vr(r,2)}, {vr(r,2)}, {vr(tmp+2*i,2)}")

def k1_prefetch():
    if "nopf" in EXP: return
    e("  s_load_dwordx2 s[76:77], s[0:1], 16")
    e("  s_load_dwordx2 s[78:79], s[0:1], 40")
    e("  s_load_dwordx2 s[80:81], s[0:1], 56")
    e("  s_lshl_b32 s48, s2, 3")
    e("  s_add_u32 s48, s48, s24")
    e("  s_lshl_b32 s75, s48, 10")
    e("  s_lshl_b32 s82, s48, 12")
    e("  v_lshlrev_b32 v160, 4, v1")
    e("  s_mov_b32 s83, 1")
    e("  s_cmp_lt_u32 s24, 2")
    e("  s_cselect_b32 s83, 0, s83")
    e("  s_lshr_b32 s48, s24, 1")
    e("  s_cmp_eq_u32 s48, 1")
    e("  s_cselect_b32 s83, 2, s83")
    e("  s_mov_b32 s83, 1")
    e("  s_waitcnt lgkmcnt(0)")
    for i in (-3, -2, -1): k1_prefetch_step(i)
def k1_prefetch_step(i):
    if "nopf" in EXP: return
    l = L("pf"); l2 = L("pf")
    e("  s_cmp_eq_u32 s83, 0")
    e(f"  s_cbranch_scc1 {l}")
    if i == -3: pass
    elif i == -2: srd(84, 6, 512 * 3072)
    elif i == -1: srd(84, 8, 512 * 2752)
    elif i < 4: srd(84, 78, 2048 * 4096)
    elif i == 4: srd(84, 76, 512 * 1024)
    elif i == 5: srd(84, 80, 688 * 1024)
    sr = "s[12:15]" if i == -3 else "s[84:87]"
    if 0 <= i < 4:
        e(f"  buffer_load_dwordx4 v[164:167], v160, {sr}, s82 offen offset:{i*1024}")
    else:
        e(f"  buffer_load_dwordx4 v[164:167], v160, {sr}, s75 offen")
    e("  s_cmp_eq_u32 s83, 2")
    e(f"  s_cbranch_scc0 {l}")
    if 0 <= i < 4:
        e("  s_sub_u32 s48, s82, 8192")
        e(f"  buffer_load_dwordx4 v[164:167], v160, {sr}, s48 offen offset:{i*1024}")
    else:
        e("  s_sub_u32 s48, s75, 2048")
        e(f"  buffer_load_dwordx4 v[164:167], v160, {sr}, s48 offen")
    e(f"{l}:")

def gen_k1():
    name = "k1_kernel"
    kernel_begin(name)
    e("  s_cmp_ge_u32 s2, 256")
    e("  s_cbranch_scc1 k1_end")
    if STAMP: e(f"  v_mov_b32 v{SV}, 0")
    stamp(0, SV)
    rstamp(59, SV)
    e("  s_load_dwordx4 s[4:7], s[0:1], 0")
    e("  s_load_dwordx2 s[8:9], s[0:1], 32")
    e("  s_load_dwordx2 s[10:11], s[0:1], 64")
    e("  s_load_dwordx4 s[60:63], s[0:1], 80")
    e("  v_and_b32 v1, 63, v0")
    e("  v_lshrrev_b32 v2, 6, v0")
    e("  s_nop 0")
    e("  v_readfirstlane_b32 s24, v2")
    e("  s_and_b32 s46, s2, 7")
    e("  s_lshr_b32 s47, s2, 3")
    e("  s_lshr_b32 s27, s47, 4")
    e("  s_lshr_b32 s28, s47, 1")
    e("  s_and_b32 s28, s28, 7")
    e("  s_lshr_b32 s48, s46, 2")
    e("  s_lshl_b32 s48, s48, 3")
    e("  s_add_u32 s28, s28, s48")
    e("  s_and_b32 s29, s46, 3")
    e("  s_lshl_b32 s29, s29, 1")
    e("  s_and_b32 s48, s47, 1")
    e("  s_add_u32 s29, s29, s48")
    e("  v_and_b32 v13, 15, v1")
    e("  v_lshrrev_b32 v14, 4, v1")
    e("  s_waitcnt lgkmcnt(0)")
    srd(12, 4, 2048 * 1024)
    srd(20, 62, WS_SIZE)
    e("  s_cmp_ge_u32 s24, 8")
    e("  s_cbranch_scc1 k1_load")
    k1_prefetch()
    e("  s_cmp_eq_u32 s27, 0")
    e("  s_cbranch_scc0 k1_zc")
    ACC = 16; XF = 76; WF = 116
    def acc(j, bi): return ACC + (j * 5 + bi) * 4
    def xf(u, bi): return XF + (u * 5 + bi) * 4
    def wf(u, j): return WF + (u * 3 + j) * 4
    e("  s_and_b32 s25, s24, 3")
    e("  s_lshr_b32 s26, s24, 2")
    e("  s_cmp_eq_u32 s26, 0")
    e("  s_cselect_b32 s31, 1, 0")
    e("  v_and_b32 v15, 7, v13")
    e("  v_xor_b32 v15, v15, v14")
    e("  v_lshlrev_b32 v15, 4, v15")
    e("  v_lshl_add_u32 v15, v13, 7, v15")
    e("  s_lshl_b32 s48, s26, 13")
    e("  v_add_u32 v4, s48, v15")
    e("  v_xor_b32 v7, 64, v4")
    for st in range(1, 3):
        e(f"  v_add_u32 v{4+st}, {st*K1_STAGE}, v4")
        e(f"  v_add_u32 v{7+st}, {st*K1_STAGE}, v7")
    e("  v_bfe_u32 v15, v1, 2, 2")
    e("  v_and_b32 v10, 1, v14")
    e("  v_lshlrev_b32 v10, 1, v10")
    e("  v_lshrrev_b32 v11, 1, v15")
    e("  v_or_b32 v10, v10, v11")
    e("  v_lshlrev_b32 v10, 1, v10")
    e("  v_bfe_u32 v11, v1, 1, 1")
    e("  s_lshl_b32 s48, s25, 1")
    e("  v_add_u32 v11, s48, v11")
    e("  v_xor_b32 v10, v10, v11")
    e("  v_lshlrev_b32 v10, 4, v10")
    e("  v_lshl_add_u32 v10, v14, 10, v10")
    e("  v_lshl_add_u32 v10, v15, 7, v10")
    e("  v_and_b32 v11, 1, v1")
    e("  v_lshl_add_u32 v10, v11, 3, v10")
    for st in range(1, 3):
        e(f"  v_add_u32 v{10+st}, {st*K1_STAGE}, v10")
    for r in range(ACC, ACC + 60):
        e(f"  v_mov_b32 v{r}, 0")
    def qreads(k, u):
        st = k % 3
        l = L("k1x")
        e("  s_cmp_eq_u32 s31, 0")
        e(f"  s_cbranch_scc1 {l}")
        e(f"  ds_read_b128 {vr(xf(u,4))}, v{4+3*u+st} offset:0")
        e(f"{l}:")
        for j in range(3):
            for q in range(2):
                e(f"  ds_read_b64_tr_b16 {vr(wf(u,j)+2*q,2)}, v{10+st} offset:{18432 + j*8192 + u*4096 + q*512}")
        for b in range(4):
            e(f"  ds_read_b128 {vr(xf(u,b))}, v{4+3*u+st} offset:{(1+b)*2048}")
    def qmfma(u):
        for j in range(3):
            for b in range(4):
                e(f"  v_mfma_f32_16x16x32_bf16 {vr(acc(j,b))}, {vr(wf(u,j))}, {vr(xf(u,b))}, {vr(acc(j,b))}")
        l = L("k1m")
        e("  s_cmp_eq_u32 s31, 0")
        e(f"  s_cbranch_scc1 {l}")
        for j in (1, 2):
            e(f"  v_mfma_f32_16x16x32_bf16 {vr(acc(j,4))}, {vr(wf(u,j))}, {vr(xf(u,4))}, {vr(acc(j,4))}")
        e(f"{l}:")
    if "notouch" not in EXP:
        e("  s_cmp_ge_u32 s24, 4")
        e("  s_cbranch_scc1 k1_tw%d" % 0)
        e("  s_lshl_b32 s48, s27, 1")
        e("  s_and_b32 s49, s47, 1")
        e("  s_add_u32 s48, s48, s49")
        e("  s_lshl_b32 s48, s48, 5")
        e("  s_lshl_b32 s49, s24, 3")
        e("  s_add_u32 s48, s48, s49")
        e("  s_lshl_b32 s49, s28, 7")
        e("  s_add_u32 s48, s48, s49")
        e("  s_lshl_b32 s48, s48, 10")
        e("  v_lshrrev_b32 v161, 3, v1")
        e("  v_and_b32 v162, 7, v1")
        e("  v_lshlrev_b32 v162, 7, v162")
        e("  v_lshl_add_u32 v161, v161, 10, v162")
        e("  buffer_load_dword v160, v161, s[12:15], s48 offen")
        e("  s_branch k1_td%d" % 0)
        e("k1_tw%d:" % 0)
        e("  s_and_b32 s48, s28, 7")
        e("  s_lshl_b32 s48, s48, 6")
        e("  v_add_u32 v161, s48, v1")
        srd(16, 6, 512 * 3072)
        e("  v_mul_u32_u24 v161, 3072, v161")
        e("  s_sub_u32 s48, s24, 4")
        e("  s_min_u32 s48, s48, 2")
        e("  s_lshl_b32 s48, s48, 10")
        e("  s_lshl_b32 s49, s29, 7")
        e("  s_add_u32 s48, s48, s49")
        e("  buffer_load_dword v160, v161, s[16:19], s48 offen")
        e("k1_td0:")
    e("  s_barrier")
    stamp(1, SV)
    qreads(0, 0)
    for k in range(8):
        if PF0 <= k < PF0 + 6: k1_prefetch_step(k - PF0)
        qreads(k, 1)
        e("  s_waitcnt lgkmcnt(10)")
        qmfma(0)
        e("  s_waitcnt lgkmcnt(0)")
        if k < 7:
            stamp(2 + 2*k, SV)
            e("  s_barrier")
            stamp(3 + 2*k, SV)
            qreads(k + 1, 0)
        qmfma(1)
    e("  s_nop 7")
    e("  s_nop 7")
    stamp(30, SV)
    e("  s_barrier")
    stamp(31, SV)
    e("  s_mul_i32 s48, s25, 13824")
    e("  v_lshrrev_b32 v2, 1, v14")
    e("  v_mul_u32_u24 v2, 2304, v2")
    e("  v_and_b32 v3, 1, v14")
    e("  v_lshl_add_u32 v2, v3, 3, v2")
    e("  v_lshl_add_u32 v2, v13, 4, v2")
    e("  s_lshl_b32 s49, s26, 10")
    e("  s_add_u32 s48, s48, s49")
    e("  v_add_u32 v2, s48, v2")
    for j in range(3):
        for b in range(4):
            a = acc(j, b)
            e(f"  v_cvt_pk_bf16_f32 v{a}, v{a}, v{a+1}")
            e(f"  v_cvt_pk_bf16_f32 v{a+1}, v{a+2}, v{a+3}")
            e(f"  ds_write_b64 v2, {vr(a,2)} offset:{j*4608 + (1+b)*256}")
    l = L("k1w")
    e("  s_cmp_eq_u32 s31, 0")
    e(f"  s_cbranch_scc1 {l}")
    for j in (1, 2):
        a = acc(j, 4)
        e(f"  v_cvt_pk_bf16_f32 v{a}, v{a}, v{a+1}")
        e(f"  v_cvt_pk_bf16_f32 v{a+1}, v{a+2}, v{a+3}")
        e(f"  ds_write_b64 v2, {vr(a,2)} offset:{j*4608}")
    e(f"{l}:")
    e("  s_waitcnt lgkmcnt(0)")
    e("  s_barrier")
    e("  s_mul_i32 s48, s25, 13824")
    e("  s_lshl_b32 s49, s26, 10")
    e("  s_add_u32 s48, s48, s49")
    e("  s_add_u32 s48, s48, 32")
    e("  v_lshlrev_b32 v2, 4, v1")
    e("  v_add_u32 v2, s48, v2")
    Q = 16; KR = 24; VR = 24; LG = 88; OA = 96
    for p in range(2):
        e(f"  ds_read_b128 {vr(Q+4*p)}, v2 offset:{p*2304 + 224}")
    for w in range(8):
        for p in range(2):
            e(f"  ds_read_b128 {vr(KR+8*w+4*p)}, v2 offset:{(2+p)*2304 + (7-w)*32}")
    e("  s_lshl_b32 s48, s28, 7")
    e("  s_lshl_b32 s49, s26, 6")
    e("  s_add_u32 s48, s48, s49")
    e("  v_add_u32 v3, s48, v1")
    for w in range(8):
        e(f"  v_mov_b32 v{LG+w}, 0")
    e("  s_waitcnt lgkmcnt(0)")
    for i in range(8):
        for w in range(8):
            e(f"  v_dot2c_f32_bf16 v{LG+w}, v{Q+i}, v{KR+8*w+i}")
    for w in range(8):
        for p in range(2):
            e(f"  ds_read_b128 {vr(VR+8*w+4*p)}, v2 offset:{(4+p)*2304 + (7-w)*32}")
    e(f"  v_mov_b32 v4, {fx(-1e9)}")
    e(f"  s_mov_b32 s48, {fx(0.25*LOG2E)}")
    for w in range(8):
        e(f"  v_mul_f32 v{LG+w}, s48, v{LG+w}")
    for w in range(1, 8):
        e(f"  v_cmp_le_u32 vcc, {2*w}, v3")
        e("  s_nop 1")
        e(f"  v_cndmask_b32 v{LG+w}, v4, v{LG+w}, vcc")
    e(f"  v_max3_f32 v5, v{LG}, v{LG+1}, v{LG+2}")
    e(f"  v_max3_f32 v5, v5, v{LG+3}, v{LG+4}")
    e(f"  v_max3_f32 v5, v5, v{LG+5}, v{LG+6}")
    e(f"  v_max_f32 v5, v5, v{LG+7}")
    for w in range(8):
        e(f"  v_sub_f32 v{LG+w}, v{LG+w}, v5")
    for w in range(8):
        e(f"  v_exp_f32 v{LG+w}, v{LG+w}")
    e("  s_nop 0")
    e(f"  v_add_f32 v5, v{LG}, v{LG+1}")
    for w in range(2, 8):
        e(f"  v_add_f32 v5, v5, v{LG+w}")
    e("  v_rcp_f32 v5, v5")
    e("  s_nop 0")
    for w in range(8):
        e(f"  v_mul_f32 v{LG+w}, v{LG+w}, v5")
    for w in range(8):
        e(f"  v_cvt_pk_bf16_f32 v{LG+w}, v{LG+w}, 0")
    for i in range(16):
        e(f"  v_mov_b32 v{OA+i}, 0")
    e("  s_waitcnt lgkmcnt(0)")
    for w in range(8):
        e(f"  v_lshlrev_b32 v6, 16, v{LG+w}")
        for i in range(8):
            e(f"  v_dot2c_f32_bf16 v{OA+2*i}, v{VR+8*w+i}, v{LG+w}")
            e(f"  v_dot2c_f32_bf16 v{OA+2*i+1}, v{VR+8*w+i}, v6")
    e("  s_nop 2")
    for i in range(8):
        e(f"  v_cvt_pk_bf16_f32 v{Q+i}, v{OA+2*i}, v{OA+2*i+1}")
    e("  s_lshl_b32 s48, s29, 2")
    e("  s_add_u32 s48, s48, s25")
    e("  s_lshl_b32 s48, s48, 5")
    e(f"  s_add_u32 s48, s48, {WS_O}")
    e("  v_lshlrev_b32 v3, 10, v3")
    e(f"  buffer_store_dwordx4 {vr(Q)}, v3, s[20:23], s48 offen")
    e(f"  buffer_store_dwordx4 {vr(Q+4)}, v3, s[20:23], s48 offen offset:16")
    stamp(40, SV)
    stamp_flush(20, SV, SV-1, 34)
    e("  s_endpgm")
    e("k1_zc:")
    A2 = 16; A1 = 40; FR = 64
    e("  s_and_b32 s25, s24, 3")
    e("  s_lshr_b32 s26, s24, 2")
    e("  s_mul_i32 s30, s29, 5")
    e("  s_min_u32 s48, s29, 3")
    e("  s_add_u32 s30, s30, s48")
    e("  s_cmp_lt_u32 s29, 3")
    e("  s_cselect_b32 s50, 6, 5")
    e("  s_mul_i32 s49, s26, 3")
    e("  s_add_u32 s49, s49, 2")
    e("  s_cmp_lt_u32 s49, s50")
    e("  s_cselect_b32 s57, 1, 0")
    e("  v_and_b32 v15, 7, v13")
    e("  v_xor_b32 v15, v15, v14")
    e("  v_lshlrev_b32 v15, 4, v15")
    e("  v_lshl_add_u32 v15, v13, 7, v15")
    e("  s_lshl_b32 s48, s25, 12")
    e("  v_add_u32 v104, s48, v15")
    e("  v_xor_b32 v105, 64, v104")
    e("  v_bfe_u32 v15, v1, 2, 2")
    e("  v_lshl_add_u32 v15, v14, 3, v15")
    e("  v_mul_u32_u24 v15, 192, v15")
    e("  v_and_b32 v6, 1, v1")
    e("  v_lshl_add_u32 v15, v6, 3, v15")
    e("  v_bfe_u32 v6, v1, 1, 1")
    e("  v_and_b32 v7, 1, v14")
    e("  v_lshlrev_b32 v7, 1, v7")
    e("  s_mul_i32 s48, s26, 6")
    for fb in range(3):
        e(f"  s_add_u32 s49, s48, {2*fb}")
        e(f"  v_add_u32 v8, s49, v6")
        e(f"  v_xor_b32 v8, v8, v7")
        e(f"  v_lshl_add_u32 v8, v8, 4, v15")
        e(f"  v_add_u32 v{106+fb}, 16384, v8")
    for sl in range(1, K1Z_NS):
        for r in range(5):
            e(f"  v_add_u32 v{104+5*sl+r}, {sl*K1Z_STAGE}, v{104+r}")
    for r in range(A2, A2 + 48):
        e(f"  v_mov_b32 v{r}, 0")
    for r in (124, 125): e(f"  v_mov_b32 v{r}, {fx(-GC1)}")
    for r in (126, 127): e(f"  v_mov_b32 v{r}, {fx(-GC0)}")
    for r in (128, 129): e(f"  v_mov_b32 v{r}, 1.0")
    e("  s_lshl_b32 s48, s28, 7")
    e("  s_lshl_b32 s49, s25, 5")
    e("  s_add_u32 s48, s48, s49")
    e("  v_add_u32 v2, s48, v13")
    e("  s_movk_i32 s48, 2752")
    e("  v_mul_lo_u32 v2, v2, s48")
    e("  v_lshl_add_u32 v2, v14, 3, v2")
    e("  s_mul_i32 s49, s26, 3")
    e("  s_add_u32 s49, s49, s30")
    e("  s_lshl_b32 s58, s49, 5")
    e(f"  s_add_u32 s58, s58, {WS_Z}")
    e("  s_lshl_b32 s48, s28, 7")
    e("  s_lshl_b32 s49, s25, 5")
    e("  s_add_u32 s48, s48, s49")
    e("  v_add_u32 v3, s48, v13")
    e("  v_mul_u32_u24 v3, 192, v3")
    e("  v_lshl_add_u32 v3, v14, 3, v3")
    e("  s_mul_i32 s56, s29, 393216")
    e("  s_mul_i32 s49, s26, 96")
    e("  s_add_u32 s56, s56, s49")
    e(f"  s_add_u32 s56, s56, {WS_Z2}")
    def zreads(k, u):
        sl = k % K1Z_NS; st = (k * 2 + u) % 2; b = FR + st * 20
        for fb in range(3):
            for q in range(2):
                e(f"  ds_read_b64_tr_b16 {vr(b+4*fb+2*q,2)}, v{106+5*sl+fb} offset:{u*32*192 + q*768}")
        for tb in range(2):
            e(f"  ds_read_b128 {vr(b+12+4*tb)}, v{104+5*sl+u} offset:{tb*2048}")
    def zmfma(k, u):
        st = (k * 2 + u) % 2; b = FR + st * 20
        AC = A2 if k < 8 else A1
        for fb in range(3):
            for tb in range(2):
                a = AC + (fb * 2 + tb) * 4
                e(f"  v_mfma_f32_16x16x32_bf16 {vr(a)}, {vr(b+4*fb)}, {vr(b+12+4*tb)}, {vr(a)}")
    def cond_fb2(fn):
        l = L("k1z")
        e("  s_cmp_eq_u32 s57, 0")
        e(f"  s_cbranch_scc1 {l}")
        fn()
        e(f"{l}:")
    TMP = 130
    def gelu_fb(AC, fb):
        regs = []
        for tb in range(2):
            a = AC + (fb * 2 + tb) * 4
            regs += [a, a + 2]
        gelu_pk(regs, TMP, 124, 128)
    def store_fb(AC, fb, colofs, norm):
        for tb in range(2):
            a = AC + (fb * 2 + tb) * 4
            if norm:
                for r in range(4):
                    e(f"  v_fma_f32 v{a+r}, v{a+r}, v{140+2*tb}, -v{141+2*tb}")
            e(f"  v_cvt_pk_bf16_f32 v{a}, v{a}, v{a+1}")
            e(f"  v_cvt_pk_bf16_f32 v{a+1}, v{a+2}, v{a+3}")
            if norm:
                e(f"  s_add_u32 s48, s56, {tb*16*192}")
                e(f"  buffer_store_dwordx2 {vr(a,2)}, v3, s[20:23], s48 offen offset:{fb*32}")
            else:
                e(f"  s_add_u32 s48, s58, {colofs + tb*16*2752}")
                e(f"  buffer_store_dwordx2 {vr(a,2)}, v2, s[20:23], s48 offen offset:{fb*32}")
    def stat_fb(fb):
        for tb in range(2):
            a = A2 + (fb * 2 + tb) * 4
            for r in range(4):
                e(f"  v_add_f32 v{140+2*tb}, v{140+2*tb}, v{a+r}")
                e(f"  v_fmac_f32 v{141+2*tb}, v{a+r}, v{a+r}")
    srd(64, 60, 256)
    e("  s_memrealtime s[90:91]")
    e("  s_waitcnt lgkmcnt(0)")
    e("  s_or_b32 s54, s90, 1")
    e("  v_mov_b32 v138, s54")
    e("  v_mov_b32 v139, 0")
    e("  v_mov_b32 v161, 0")
    e("  s_lshl_b32 s59, s28, 2")
    lwn = L("k1n")
    e("  s_cmp_ge_u32 s24, 1")
    e(f"  s_cbranch_scc1 {lwn}")
    e("  s_mov_b64 exec, 1")
    e("  buffer_atomic_cmpswap v[138:139], v161, s[64:67], s59 offen offset:64 sc0 sc1")
    e("  s_mov_b64 exec, -1")
    e(f"{lwn}:")
    if "notouch" not in EXP:
        e("  s_cmp_ge_u32 s24, 4")
        e("  s_cbranch_scc1 k1_tw%d" % 1)
        e("  s_lshl_b32 s48, s27, 1")
        e("  s_and_b32 s49, s47, 1")
        e("  s_add_u32 s48, s48, s49")
        e("  s_lshl_b32 s48, s48, 5")
        e("  s_lshl_b32 s49, s24, 3")
        e("  s_add_u32 s48, s48, s49")
        e("  s_lshl_b32 s49, s28, 7")
        e("  s_add_u32 s48, s48, s49")
        e("  s_lshl_b32 s48, s48, 10")
        e("  v_lshrrev_b32 v161, 3, v1")
        e("  v_and_b32 v162, 7, v1")
        e("  v_lshlrev_b32 v162, 7, v162")
        e("  v_lshl_add_u32 v161, v161, 10, v162")
        e("  buffer_load_dword v160, v161, s[12:15], s48 offen")
        e("  s_branch k1_td%d" % 1)
        e("k1_tw%d:" % 1)
        e("  s_and_b32 s48, s28, 7")
        e("  s_lshl_b32 s48, s48, 6")
        e("  v_add_u32 v161, s48, v1")
        srd(16, 8, 512 * 2752)
        e("  s_movk_i32 s49, 2752")
        e("  v_mul_lo_u32 v161, v161, s49")
        e("  s_lshl_b32 s48, s30, 5")
        e("  s_and_b32 s49, s24, 1")
        e("  s_lshl_b32 s49, s49, 7")
        e("  s_add_u32 s48, s48, s49")
        e("  s_cmp_lt_u32 s24, 6")
        e("  s_cselect_b32 s49, 1376, 0")
        e("  s_add_u32 s48, s48, s49")
        e("  buffer_load_dword v160, v161, s[16:19], s48 offen")
        e("  buffer_load_dword v160, v161, s[16:19], s48 offen offset:60")
        e("k1_td1:")
    e("  s_barrier")
    stamp(1, SV)
    zreads(0, 0)
    for k in range(16):
        if PFZ <= k < PFZ + 6: k1_prefetch_step(k - PFZ)
        zreads(k, 1)
        e("  s_waitcnt lgkmcnt(8)")
        zmfma(k, 0)
        e("  s_waitcnt lgkmcnt(0)")
        if k < 15:
            if k < 12: stamp(2 + 2*k, SV)
            e("  s_barrier")
            if k < 12: stamp(3 + 2*k, SV)
            zreads(k + 1, 0)
        zmfma(k, 1)
        if k == 7:
            e("  s_nop 7")
            e("  s_nop 7")
            stamp(30, SV)
            for r in range(140, 144): e(f"  v_mov_b32 v{r}, 0")
            for fb in range(2):
                gelu_fb(A2, fb); stat_fb(fb)
            cond_fb2(lambda: (gelu_fb(A2, 2), stat_fb(2)))
            e("  s_lshl_b32 s48, s26, 12")
            e("  s_lshl_b32 s49, s25, 8")
            e("  s_add_u32 s48, s48, s49")
            e(f"  s_add_u32 s48, s48, {K1Z_ST}")
            e("  v_lshlrev_b32 v4, 10, v14")
            e("  v_lshl_add_u32 v4, v13, 3, v4")
            e("  v_add_u32 v4, s48, v4")
            for tb in range(2):
                e(f"  ds_write_b64 v4, {vr(140+2*tb,2)} offset:{tb*128}")
            lwn = L("k1n")
            e("  s_cmp_ge_u32 s24, 1")
            e(f"  s_cbranch_scc1 {lwn}")
            e("  s_waitcnt vmcnt(0)")
            e("  v_readfirstlane_b32 s53, v138")
            e("  s_cmp_eq_u32 s53, 0")
            e("  s_cselect_b32 s54, s54, s53")
            e("  v_mov_b32 v5, s54")
            e(f"  v_mov_b32 v6, {K1Z_ST + 9216}")
            e("  ds_write_b32 v6, v5")
            e(f"{lwn}:")
            e("  s_waitcnt lgkmcnt(0)")
            e("  s_barrier")
            lw = L("k1p")
            e("  s_cmp_ge_u32 s24, 2")
            e(f"  s_cbranch_scc1 {lw}")
            e("  v_lshlrev_b32 v4, 3, v0")
            e(f"  v_add_u32 v4, {K1Z_ST}, v4")
            for t in range(8):
                e(f"  ds_read_b64 {vr(144+2*t,2)}, v4 offset:{t*1024}")
            e("  s_waitcnt lgkmcnt(0)")
            for t in range(1, 8):
                e(f"  v_add_f32 v144, v144, v{144+2*t}")
                e(f"  v_add_f32 v145, v145, v{145+2*t}")
            e(f"  v_mov_b32 v6, {K1Z_ST + 9216}")
            e("  ds_read_b32 v147, v6")
            e("  v_mov_b32 v146, v145")
            e("  s_waitcnt lgkmcnt(0)")
            e("  v_mov_b32 v145, v147")
            e("  s_lshl_b32 s48, s28, 7")
            e("  v_add_u32 v4, s48, v0")
            e("  v_lshlrev_b32 v4, 4, v4")
            e("  s_lshl_b32 s48, s29, 15")
            e(f"  s_add_u32 s48, s48, {WS_ST}")
            e("  buffer_store_dwordx4 v[144:147], v4, s[20:23], s48 offen sc0 sc1")
            e(f"{lw}:")
            stamp(31, SV)
    e("  s_nop 7")
    e("  s_nop 7")
    stamp(32, SV)
    e("  s_lshl_b32 s48, s25, 5")
    e("  v_add_u32 v4, s48, v13")
    e("  v_mul_u32_u24 v4, 192, v4")
    e("  v_lshl_add_u32 v4, v14, 3, v4")
    e("  s_mul_i32 s48, s26, 96")
    e("  v_add_u32 v4, s48, v4")
    def lds_fb(AC, fb, base, norm):
        for tb in range(2):
            a = AC + (fb * 2 + tb) * 4
            if norm:
                for r in range(4):
                    e(f"  v_fma_f32 v{a+r}, v{a+r}, v{140+2*tb}, -v{141+2*tb}")
            e(f"  v_cvt_pk_bf16_f32 v{a}, v{a}, v{a+1}")
            e(f"  v_cvt_pk_bf16_f32 v{a+1}, v{a+2}, v{a+3}")
            e(f"  ds_write_b64 v4, {vr(a,2)} offset:{base + tb*16*192 + fb*32}")
    for fb in range(2):
        gelu_fb(A1, fb); lds_fb(A1, fb, 0, False)
    cond_fb2(lambda: (gelu_fb(A1, 2), lds_fb(A1, 2, 0, False)))
    e("  s_waitcnt lgkmcnt(0)")
    stamp(33, SV)
    e("  s_barrier")
    stamp(34, SV)
    e("  s_lshl_b32 s48, s25, 8")
    e(f"  s_add_u32 s48, s48, {K1Z_ST + 8192}")
    e("  v_lshlrev_b32 v5, 3, v13")
    e("  v_add_u32 v5, s48, v5")
    for tb in range(2):
        e(f"  ds_read_b64 {vr(140+2*tb,2)}, v5 offset:{tb*128}")
    e("  s_mul_i32 s48, s24, 3072")
    e("  v_lshlrev_b32 v6, 4, v1")
    e("  v_add_u32 v6, s48, v6")
    for j in range(3):
        e(f"  ds_read_b128 {vr(64+4*j)}, v6 offset:{j*1024}")
    e("  s_mul_i32 s56, s29, 393216")
    e("  s_mul_i32 s49, s28, 24576")
    e("  s_add_u32 s56, s56, s49")
    e("  s_waitcnt lgkmcnt(3)")
    for fb in range(2):
        lds_fb(A2, fb, K1Z_STAGE, True)
    cond_fb2(lambda: lds_fb(A2, 2, K1Z_STAGE, True))
    e("  s_waitcnt lgkmcnt(0)")
    e("  s_barrier")
    e(f"  s_add_u32 s48, s56, {WS_Z1}")
    for j in range(3):
        e(f"  buffer_store_dwordx4 {vr(64+4*j)}, v6, s[20:23], s48 offen offset:{j*1024}")
    for j in range(3):
        e(f"  ds_read_b128 {vr(80+4*j)}, v6 offset:{K1Z_STAGE + j*1024}")
    e("  s_waitcnt lgkmcnt(0)")
    e(f"  s_add_u32 s48, s56, {WS_Z2}")
    for j in range(3):
        e(f"  buffer_store_dwordx4 {vr(80+4*j)}, v6, s[20:23], s48 offen offset:{j*1024}")
    stamp(40, SV)
    stamp_flush(20, SV, SV-1, 34)
    e("  s_endpgm")
    e("k1_load:")
    e("  s_sub_u32 s25, s24, 8")
    e("  v_lshrrev_b32 v4, 3, v1")
    e("  v_and_b32 v5, 7, v1")
    e("  v_xor_b32 v5, v5, v4")
    e("  v_lshlrev_b32 v5, 4, v5")
    e("  v_lshl_add_u32 v2, v4, 10, v5")
    e("  s_lshl_b32 s35, s25, 10")
    e("  s_cmp_eq_u32 s27, 0")
    e("  s_cbranch_scc0 k1_lz")
    srd(16, 6, 512 * 3072)
    e("  s_and_b32 s48, s25, 1")
    e("  s_lshl_b32 s48, s48, 2")
    e("  v_lshrrev_b32 v5, 4, v1")
    e("  v_and_b32 v5, 1, v5")
    e("  v_lshlrev_b32 v5, 1, v5")
    e("  v_or_b32 v5, s48, v5")
    e("  v_and_b32 v6, 7, v1")
    e("  v_xor_b32 v5, v5, v6")
    e("  v_lshlrev_b32 v5, 4, v5")
    e("  v_mul_u32_u24 v3, 3072, v4")
    e("  v_add_u32 v3, v3, v5")
    e(f"  s_mul_i32 s36, s25, {8*3072}")
    e("  s_lshl_b32 s48, s29, 7")
    e("  s_add_u32 s36, s36, s48")
    e("  s_lshl_b32 s48, s28, 17")
    e("  s_lshl_b32 s49, s25, 13")
    e("  s_add_u32 s32, s48, s49")
    e("  s_sub_u32 s32, s32, 16384")
    e("  s_cmp_lt_i32 s32, 0")
    e("  s_cselect_b32 s33, 0, s32")
    e("  s_cmp_lt_u32 s25, 2")
    e("  s_cselect_b32 s43, 1, 0")
    q = []
    def qissue(k):
        sb = (k % 3) * K1_STAGE
        for j in range(3):
            for ii in range(2):
                e(f"  s_add_u32 m0, s35, {sb + 18432 + j*8192 + ii*4096}")
                e(f"  s_add_u32 s42, s36, {k*64*3072 + j*1024 + ii*32*3072}")
                e("  buffer_load_dwordx4 v3, s[16:19], s42 offen lds"); q.append(k)
        for m in range(4):
            e(f"  s_add_u32 m0, s35, {sb + m*4096}")
            e(f"  s_add_u32 s42, s{33 if m == 0 else 32}, {k*128 + m*32*1024}")
            e("  buffer_load_dwordx4 v2, s[12:15], s42 offen lds"); q.append(k)
        l = L("k1h")
        e("  s_cmp_eq_u32 s43, 0")
        e(f"  s_cbranch_scc1 {l}")
        e(f"  s_add_u32 m0, s35, {sb + 16384}")
        e(f"  s_add_u32 s42, s32, {k*128 + 128*1024}")
        e("  buffer_load_dwordx4 v2, s[12:15], s42 offen lds")
        e(f"{l}:")
    def wait_for(k):
        idx = max(i for i, o in enumerate(q) if o == k)
        e(f"  s_waitcnt vmcnt({min(63, len(q) - 1 - idx)})")
    def gate_load(qq):
        srd(52, 10, 1024)
        e("  s_lshl_b32 s74, s2, 3")
        e("  s_lshl_b32 s49, s25, 1")
        e("  s_add_u32 s74, s74, s49")
        e("  s_lshl_b32 s49, s74, 10")
        e("  v_lshlrev_b32 v8, 4, v1")
        e("  buffer_load_dwordx4 v[140:143], v8, s[12:15], s49 offen")
        e("  buffer_load_dwordx4 v[148:151], v8, s[12:15], s49 offen offset:1024")
        e("  buffer_load_dwordx4 v[144:147], v8, s[52:55], 0 offen")
        qq += ["g", "g", "g"]
    def gate(qq):
        for rr in range(2):
            e(f"  v_mov_b32 v{152+rr}, 0")
            for i in range(4):
                e(f"  v_dot2c_f32_bf16 v{152+rr}, v{140+8*rr+i}, v{144+i}")
        e("  s_nop 3")
        for sh in (8, 4, 2, 1):
            for rr in range(2):
                e(f"  v_add_f32_dpp v{152+rr}, v{152+rr}, v{152+rr} row_ror:{sh} row_mask:0xf bank_mask:0xf")
            e("  s_nop 1")
        for rr in range(2):
            e(f"  v_readlane_b32 s70, v{152+rr}, 0")
            e(f"  v_readlane_b32 s71, v{152+rr}, 16")
            e(f"  v_readlane_b32 s72, v{152+rr}, 32")
            e(f"  v_readlane_b32 s73, v{152+rr}, 48")
            e("  s_nop 1")
            e(f"  v_mov_b32 v{154+rr}, s70")
            e(f"  v_add_f32 v{154+rr}, s71, v{154+rr}")
            e(f"  v_add_f32 v{154+rr}, s72, v{154+rr}")
            e(f"  v_add_f32 v{154+rr}, s73, v{154+rr}")
            e(f"  v_mul_f32 v{154+rr}, {fx(-LOG2E)}, v{154+rr}")
            e(f"  v_exp_f32 v{154+rr}, v{154+rr}")
            e("  s_nop 0")
            e(f"  v_add_f32 v{154+rr}, 1.0, v{154+rr}")
            e(f"  v_rcp_f32 v{154+rr}, v{154+rr}")
        e("  s_lshl_b32 s48, s74, 2")
        e(f"  s_add_u32 s48, s48, {WS_G}")
        e("  v_mov_b32 v9, 0")
        e("  s_mov_b64 exec, 1")
        e("  buffer_store_dwordx2 v[154:155], v9, s[20:23], s48 offen")
        e("  s_mov_b64 exec, -1")
        qq.append("g")
    stamp(1, SV)
    for k in range(2):
        qissue(k); stamp(2 + k, SV)
    stamp(5, SV)
    for k in range(8):
        wait_for(k)
        stamp(6 + 3*k, SV)
        e("  s_barrier")
        stamp(7 + 3*k, SV)
        if k + 2 < 8: qissue(k + 2)
        if k == 0: gate_load(q)
        if k == 4: gate(q)
        stamp(8 + 3*k, SV)
    stamp_flush(20, SV, SV-1, 34)
    e("  s_endpgm")
    e("k1_lz:")
    srd(16, 8, 512 * 2752)
    for p in range(3):
        e(f"  v_add_u32 v6, {64*p}, v1")
        e("  v_mul_u32_u24 v3, 0x5556, v6")
        e("  v_lshrrev_b32 v3, 18, v3")
        e("  v_mul_u32_u24 v4, 12, v3")
        e("  v_sub_u32 v4, v6, v4")
        e("  v_bfe_u32 v5, v3, 3, 1")
        e("  v_lshlrev_b32 v5, 1, v5")
        e("  v_xor_b32 v4, v4, v5")
        e("  s_movk_i32 s48, 2752")
        e("  v_mul_lo_u32 v3, v3, s48")
        e(f"  v_lshl_add_u32 v{20+p}, v4, 4, v3")
    e("  s_mul_i32 s30, s29, 5")
    e("  s_min_u32 s48, s29, 3")
    e("  s_add_u32 s30, s30, s48")
    e("  s_lshl_b32 s48, s30, 5")
    e(f"  s_mul_i32 s49, s25, {16*2752}")
    e("  s_add_u32 s36, s48, s49")
    e("  s_mul_i32 s37, s25, 3072")
    e("  s_add_u32 s37, s37, 16384")
    e("  s_lshl_b32 s48, s28, 17")
    e("  s_lshl_b32 s49, s25, 13")
    e("  s_add_u32 s32, s48, s49")
    q2 = []
    def zissue(s_):
        sb = (s_ % K1Z_NS) * K1Z_STAGE
        k = s_ & 7
        co = 1376 if s_ < 8 else 0
        for p in range(3):
            e(f"  s_add_u32 m0, s37, {sb + p*1024}")
            e(f"  s_add_u32 s42, s36, {k*64*2752 + co}")
            e(f"  buffer_load_dwordx4 v{20+p}, s[16:19], s42 offen lds"); q2.append(s_)
        for m in range(4):
            e(f"  s_add_u32 m0, s35, {sb + m*4096}")
            e(f"  s_add_u32 s42, s32, {k*128 + m*32*1024}")
            e("  buffer_load_dwordx4 v2, s[12:15], s42 offen lds"); q2.append(s_)
    def wait2(k):
        idx = max(i for i, o in enumerate(q2) if o == k)
        e(f"  s_waitcnt vmcnt({min(63, len(q2) - 1 - idx)})")
    srd(64, 60, 256)
    e("  v_subrev_u32 v24, 512, v0")
    e("  s_lshl_b32 s48, s28, 7")
    e("  v_add_u32 v25, s48, v24")
    e("  v_lshlrev_b32 v25, 4, v25")
    e("  s_memrealtime s[90:91]")
    e("  s_waitcnt lgkmcnt(0)")
    e("  s_or_b32 s54, s90, 1")
    e("  v_mov_b32 v158, s54")
    e("  v_mov_b32 v159, 0")
    e("  v_mov_b32 v157, 0")
    def gran_loads():
        for pl in range(8):
            e(f"  s_mov_b32 s48, {WS_ST + pl*32768}")
            e(f"  buffer_load_dwordx4 {vr(64+4*pl)}, v25, s[20:23], s48 offen sc0 sc1")
    for k in range(2): zissue(k)
    for k in range(16):
        if k == 15:
            lw = L("k1p"); lw2 = L("k1p")
            e("  s_cmp_ge_u32 s25, 2")
            e(f"  s_cbranch_scc1 {lw}")
            e("  s_waitcnt vmcnt(8)")
            e(f"  s_branch {lw2}")
            e(f"{lw}:")
            wait2(k)
            e(f"{lw2}:")
        else:
            wait2(k)
        e("  s_barrier")
        if k == 0:
            zissue(2); zissue(3); gate_load(q2)
        if k >= 1 and k - 1 + K1Z_NS < 16: zissue(k - 1 + K1Z_NS)
        if k == 5: gate(q2)
        if k == 8:
            e("  s_barrier")
            e(f"  v_mov_b32 v6, {K1Z_ST + 9216}")
            e("  ds_read_b32 v158, v6")
            e("  s_waitcnt lgkmcnt(0)")
        if k == PK:
            lw = L("k1p")
            e("  s_cmp_ge_u32 s25, 2")
            e(f"  s_cbranch_scc1 {lw}")
            gran_loads()
            e(f"{lw}:")
    lw = L("k1p")
    e("  s_cmp_ge_u32 s25, 2")
    e(f"  s_cbranch_scc1 {lw}")
    e("  v_readfirstlane_b32 s54, v158")
    e("  s_mov_b32 s52, 0")
    stamp(3, SV)
    e("k1_poll:")
    e("  s_waitcnt vmcnt(0)")
    e("  v_xor_b32 v5, s54, v65")
    for pl in range(8):
        for hh in (1, 3):
            if pl == 0 and hh == 1: continue
            e(f"  v_xor_b32 v6, s54, v{64+4*pl+hh}")
            e("  v_or_b32 v5, v5, v6")
    e("  v_cmp_ne_u32 vcc, 0, v5")
    e("  s_add_u32 s52, s52, 1")
    e("  s_cbranch_vccz k1_got")
    e("  s_cmp_lt_u32 s52, 0x40000")
    e("  s_cbranch_scc0 k1_got")
    e("  s_sleep 2")
    gran_loads()
    e("  s_branch k1_poll")
    e("k1_got:")
    stamp(5, SV)
    if STAMP: e(f"  v_writelane_b32 v{SV}, s52, 58")
    for t in range(1, 8):
        e(f"  v_add_f32 v64, v64, v{64+4*t}")
        e(f"  v_add_f32 v66, v66, v{66+4*t}")
    e(f"  v_mul_f32 v144, {fx(1.0/688)}, v64")
    e(f"  v_mul_f32 v145, {fx(1.0/688)}, v66")
    e("  v_fma_f32 v145, -v144, v144, v145")
    e("  v_max_f32 v145, 0, v145")
    e(f"  v_add_f32 v145, {fx(1e-5)}, v145")
    e("  v_rsq_f32 v146, v145")
    e("  s_nop 0")
    e("  v_mul_f32 v147, v144, v146")
    e("  v_lshlrev_b32 v4, 3, v24")
    e(f"  v_add_u32 v4, {K1Z_ST + 8192}, v4")
    e(f"  ds_write_b64 v4, v[146:147]")
    e("  s_waitcnt lgkmcnt(0)")
    e(f"{lw}:")
    stamp(7, SV)
    stamp_flush(20, SV, SV-1, 34)
    e("  s_barrier")
    e("k1_end:")
    e("  s_endpgm")
    return kd(name, 168)

K2_NS = 8
K2_ZOFF = K2_NS * 8192
K2_LDS = K2_ZOFF + K2_NS * 12288
K2_NIT = 32
def sched(n, ns, issue, wait, bar, extra=None, burst=2, lag=1):
    nxt = 0
    for k in range(min(2, n)):
        issue(k); nxt = k + 1
    for k in range(n):
        wait(k)
        bar(k)
        lim = min(n, k - 1 + ns + (1 if k == 0 else 0))
        lim = min(n, max(k - 1, -1) + ns + 1) if k == 0 else min(n, k - 1 + ns + 0)
        c = 0
        while nxt < n and nxt <= max(k - lag, -1) + ns and c < burst:
            issue(nxt); nxt += 1; c += 1
        if extra: extra(k)

def gen_k2():
    name = "k2_kernel"
    kernel_begin(name)
    e("  s_cmp_ge_u32 s2, 256")
    e("  s_cbranch_scc1 k2_end")
    if STAMP: e("  v_mov_b32 v126, 0")
    stamp(0, 126)
    rstamp(59, 126)
    e("  s_load_dwordx4 s[4:7], s[0:1], 40")
    e("  s_load_dwordx2 s[8:9], s[0:1], 88")
    e("  v_and_b32 v1, 63, v0")
    e("  v_lshrrev_b32 v2, 6, v0")
    e("  s_nop 0")
    e("  v_readfirstlane_b32 s24, v2")
    e("  s_and_b32 s46, s2, 7")
    e("  s_lshr_b32 s47, s2, 3")
    e("  s_lshr_b32 s28, s46, 1")
    e("  s_lshl_b32 s28, s28, 3")
    e("  s_lshr_b32 s48, s47, 2")
    e("  s_add_u32 s28, s28, s48")
    e("  s_and_b32 s29, s46, 1")
    e("  s_lshl_b32 s29, s29, 2")
    e("  s_and_b32 s48, s47, 3")
    e("  s_add_u32 s29, s29, s48")
    e("  s_mul_i32 s30, s29, 5")
    e("  s_min_u32 s48, s29, 3")
    e("  s_add_u32 s30, s30, s48")
    e("  s_waitcnt lgkmcnt(0)")
    srd(12, 4, 2048 * 4096)
    srd(16, 6, 4096)
    srd(20, 8, WS_SIZE)
    e("  s_cmp_ge_u32 s24, 4")
    e("  s_cbranch_scc1 k2_prod")
    e("  s_and_b32 s25, s24, 1")
    e("  s_lshr_b32 s26, s24, 1")
    e("  v_and_b32 v13, 15, v1")
    e("  v_lshrrev_b32 v14, 4, v1")
    ACC = 16
    FR = 40
    e("  v_and_b32 v15, 7, v13")
    e("  v_xor_b32 v15, v15, v14")
    e("  v_lshlrev_b32 v15, 4, v15")
    e("  v_lshl_add_u32 v15, v13, 7, v15")
    e("  s_lshl_b32 s48, s26, 12")
    e("  v_add_u32 v122, s48, v15")
    e("  v_xor_b32 v123, 64, v122")
    e("  v_bfe_u32 v15, v1, 2, 2")
    e("  v_lshl_add_u32 v15, v14, 3, v15")
    e("  v_mul_u32_u24 v15, 192, v15")
    e("  v_and_b32 v6, 1, v1")
    e("  v_lshl_add_u32 v15, v6, 3, v15")
    e("  v_bfe_u32 v6, v1, 1, 1")
    e("  v_and_b32 v7, 1, v14")
    e("  v_lshlrev_b32 v7, 1, v7")
    e("  s_mul_i32 s48, s25, 6")
    for fb in range(3):
        e(f"  s_add_u32 s49, s48, {2*fb}")
        e(f"  v_add_u32 v8, s49, v6")
        e(f"  v_xor_b32 v8, v8, v7")
        e(f"  v_lshl_add_u32 v8, v8, 4, v15")
        e(f"  v_add_u32 v{2+fb}, {K2_ZOFF}, v8")
        e(f"  v_add_u32 v{9+fb}, {K2_ZOFF + 4*12288}, v8")
    for r in range(ACC, ACC + 24):
        e(f"  v_mov_b32 v{r}, 0")
    e("  s_lshl_b32 s48, s28, 6")
    e("  s_lshl_b32 s49, s26, 5")
    e("  s_add_u32 s48, s48, s49")
    e("  v_add_u32 v104, s48, v13")
    e("  v_lshlrev_b32 v105, 1, v104")
    e("  v_mul_u32_u24 v106, 192, v104")
    e("  v_lshl_add_u32 v106, v14, 3, v106")
    e("  s_mul_i32 s49, s25, 3")
    e("  s_add_u32 s49, s49, s30")
    e("  s_lshl_b32 s31, s49, 5")
    e("  s_mul_i32 s51, s29, 393216")
    e("  s_mul_i32 s49, s25, 96")
    e("  s_add_u32 s51, s51, s49")
    e(f"  s_add_u32 s51, s51, {WS_Z1}")
    def epi_prefetch():
        e("  buffer_load_ushort v120, v105, s[16:19], 0 offen")
        e("  buffer_load_ushort v121, v105, s[16:19], 0 offen offset:32")
        for tb in range(2):
            for fb in range(3):
                e(f"  s_add_u32 s49, s51, {tb*16*192}")
                e(f"  buffer_load_dwordx2 {vr(108+2*(tb*3+fb),2)}, v106, s[20:23], s49 offen offset:{fb*32}")
    def rd_list(k, u):
        sl = k % K2_NS; st = (k * 2 + u) % 3; b = FR + st * 20
        zb = 2 if sl < 4 else 9
        o = []
        for fb in range(3):
            for q in range(2):
                o.append(f"  ds_read_b64_tr_b16 {vr(b+4*fb+2*q,2)}, v{zb+fb} offset:{(sl%4)*12288 + u*32*192 + q*768}")
        for tb in range(2):
            o.append(f"  ds_read_b128 {vr(b+12+4*tb)}, v{122+u} offset:{sl*8192 + tb*2048}")
        return o
    def mf_list(k, u):
        st = (k * 2 + u) % 3; b = FR + st * 20
        o = []
        for fb in range(3):
            for tb in range(2):
                a = ACC + (fb * 2 + tb) * 4
                o.append(f"  v_mfma_f32_16x16x32_bf16 {vr(a)}, {vr(b+4*fb)}, {vr(b+12+4*tb)}, {vr(a)}")
        return o
    def interleave(ms, rs):
        ri = 0
        for i, m in enumerate(ms):
            e(m)
            take = (len(rs) - ri + (len(ms) - i) - 1) // (len(ms) - i)
            for _ in range(take):
                e(rs[ri]); ri += 1
    e("  s_barrier")
    stamp(1, 126)
    for r in rd_list(0, 0) + rd_list(0, 1): e(r)
    for k in range(K2_NIT):
        if k == 8: epi_prefetch()
        if k + 1 < K2_NIT:
            if k < 24: stamp(2 + 2*k, 126)
            e("  s_barrier")
            if k < 24: stamp(3 + 2*k, 126)
        for u in range(2):
            nx = rd_list(k + 1, u) if k + 1 < K2_NIT else []
            e(f"  s_waitcnt lgkmcnt({8 if (k + 1 < K2_NIT or u == 0) else 0})")
            interleave(mf_list(k, u), nx)
    e("  s_waitcnt vmcnt(0)")
    e("  s_nop 7")
    e("  v_lshlrev_b32 v120, 16, v120")
    e("  v_lshlrev_b32 v121, 16, v121")
    e("  s_movk_i32 s48, 1408")
    e("  v_mul_lo_u32 v105, v104, s48")
    e("  v_lshl_add_u32 v105, v14, 3, v105")
    e(f"  s_add_u32 s31, s31, {WS_U}")
    e("  s_cmp_lt_u32 s29, 3")
    e("  s_cselect_b32 s50, 6, 5")
    for fb in range(3):
        lskip = L("k2e")
        if fb == 2:
            e("  s_mul_i32 s49, s25, 3")
            e("  s_add_u32 s49, s49, 2")
            e("  s_cmp_lt_u32 s49, s50")
            lval = L("k2v")
            e(f"  s_cbranch_scc1 {lval}")
            e("  s_cmp_eq_u32 s29, 7")
            e(f"  s_cbranch_scc0 {lskip}")
            for tb in range(2):
                a = ACC + (fb * 2 + tb) * 4
                e(f"  v_mov_b32 v{a}, 0")
                e(f"  v_mov_b32 v{a+1}, 0")
                e(f"  s_add_u32 s49, s31, {tb*16*1408}")
                e(f"  buffer_store_dwordx2 {vr(a,2)}, v105, s[20:23], s49 offen offset:{fb*32}")
            e(f"  s_branch {lskip}")
            e(f"{lval}:")
        for tb in range(2):
            a = ACC + (fb * 2 + tb) * 4
            z = 108 + 2 * (tb * 3 + fb)
            e(f"  v_lshlrev_b32 v60, 16, v{z}")
            e(f"  v_and_b32 v61, 0xffff0000, v{z}")
            e(f"  v_lshlrev_b32 v62, 16, v{z+1}")
            e(f"  v_and_b32 v63, 0xffff0000, v{z+1}")
            for r in range(4):
                e(f"  v_add_f32 v{a+r}, v{a+r}, v{120+tb}")
            for r in range(4):
                e(f"  v_mul_f32 v{a+r}, v{a+r}, v{60+r}")
            e(f"  v_cvt_pk_bf16_f32 v{a}, v{a}, v{a+1}")
            e(f"  v_cvt_pk_bf16_f32 v{a+1}, v{a+2}, v{a+3}")
            e(f"  s_add_u32 s49, s31, {tb*16*1408}")
            e(f"  buffer_store_dwordx2 {vr(a,2)}, v105, s[20:23], s49 offen offset:{fb*32}")
        e(f"{lskip}:")
    stamp(60, 126)
    stamp_flush(20, 126, 124, 33)
    e("  s_endpgm")
    e("k2_prod:")
    e("  s_sub_u32 s25, s24, 4")
    e("  v_lshrrev_b32 v10, 3, v1")
    e("  v_and_b32 v11, 7, v1")
    e("  v_xor_b32 v11, v11, v10")
    e("  v_lshlrev_b32 v11, 4, v11")
    e("  v_lshl_add_u32 v10, v10, 12, v11")
    e("  s_lshl_b32 s48, s28, 18")
    e("  s_lshl_b32 s49, s25, 15")
    e("  s_add_u32 s33, s48, s49")
    e("  s_lshl_b32 s35, s25, 10")
    for p in range(3):
        e(f"  v_add_u32 v2, {64*p}, v1")
        e("  v_mul_u32_u24 v3, 0x5556, v2")
        e("  v_lshrrev_b32 v3, 18, v3")
        e("  v_mul_u32_u24 v4, 12, v3")
        e("  v_sub_u32 v4, v2, v4")
        e("  v_bfe_u32 v5, v3, 3, 1")
        e("  v_lshlrev_b32 v5, 1, v5")
        e("  v_xor_b32 v4, v4, v5")
        e("  v_mul_u32_u24 v3, 192, v3")
        e(f"  v_lshl_add_u32 v{20+p}, v4, 4, v3")
    e("  s_mul_i32 s48, s29, 393216")
    e(f"  s_mul_i32 s49, s25, {16*192}")
    e("  s_add_u32 s32, s48, s49")
    e(f"  s_add_u32 s32, s32, {WS_Z2}")
    e("  s_mul_i32 s36, s25, 3072")
    e(f"  s_add_u32 s36, s36, {K2_ZOFF}")
    q = []
    def dma(k):
        sl = k % K2_NS
        for m in range(3):
            if "k2noz" in EXP: continue
            e(f"  s_add_u32 m0, s36, {sl*12288 + m*1024}")
            e(f"  s_add_u32 s42, s32, {k*64*192}")
            e(f"  buffer_load_dwordx4 v{20 + m}, s[20:23], s42 offen lds")
            q.append(k)
        for ii in range(2):
            if "k2now" in EXP: continue
            e(f"  s_add_u32 m0, s35, {sl*8192 + ii*4096}")
            e(f"  s_add_u32 s42, s33, {k*128 + ii*32*4096}")
            e("  buffer_load_dwordx4 v10, s[12:15], s42 offen lds")
            q.append(k)
    def wait_for(k):
        idx = max(i for i, o in enumerate(q) if o == k)
        e(f"  s_waitcnt vmcnt({min(63, len(q) - 1 - idx)})")
    def bar(k):
        if k < 24: stamp(2 + 2*k, 126)
        e("  s_barrier")
        if k < 24: stamp(3 + 2*k, 126)
    sched(K2_NIT, K2_NS, dma, wait_for, bar, lag=2)
    stamp(62, 126)
    stamp_flush(20, 126, 124, 33)
    e("k2_end:")
    e("  s_endpgm")
    return kd(name, 128)

K3_NS = 8
K3_LDS = K3_NS * 16384
def interleave(ms, rs):
    ri = 0
    for i, m in enumerate(ms):
        e(m)
        take = (len(rs) - ri + (len(ms) - i) - 1) // (len(ms) - i)
        for _ in range(take):
            e(rs[ri]); ri += 1
def gen_k3():
    name = NAME + "_kernel"
    NK = 19
    kernel_begin(name)
    e("  s_cmp_ge_u32 s2, 256")
    e("  s_cbranch_scc1 k3_end")
    if STAMP: e("  v_mov_b32 v127, 0")
    stamp(0)
    rstamp(59, 127)
    e("  s_load_dwordx2 s[4:5], s[0:1], 16")
    e("  s_load_dwordx2 s[6:7], s[0:1], 56")
    e("  s_load_dwordx2 s[8:9], s[0:1], 72")
    e("  s_load_dwordx2 s[10:11], s[0:1], 88")
    e("  v_and_b32 v1, 63, v0")
    e("  v_lshrrev_b32 v2, 6, v0")
    e("  s_nop 0")
    e("  v_readfirstlane_b32 s24, v2")
    e("  s_and_b32 s46, s2, 7")
    e("  s_lshr_b32 s47, s2, 3")
    e("  s_lshr_b32 s28, s46, 1")
    e("  s_lshl_b32 s28, s28, 3")
    e("  s_lshr_b32 s48, s47, 2")
    e("  s_add_u32 s28, s28, s48")
    e("  s_and_b32 s29, s46, 1")
    e("  s_lshl_b32 s29, s29, 2")
    e("  s_and_b32 s48, s47, 3")
    e("  s_add_u32 s29, s29, s48")
    e("  v_and_b32 v13, 15, v1")
    e("  v_lshrrev_b32 v14, 4, v1")
    e("  s_waitcnt lgkmcnt(0)")
    srd(20, 10, WS_SIZE)
    e("  s_cmp_ge_u32 s24, 4")
    e("  s_cbranch_scc1 k3_load")
    srd(52, 8, 2048 * 1024)
    e("  s_and_b32 s25, s24, 1")
    e("  s_lshr_b32 s26, s24, 1")
    ACA = 16; ACB = 32; FR = 48
    e("  v_and_b32 v6, 7, v13")
    e("  v_xor_b32 v6, v6, v14")
    e("  v_lshlrev_b32 v6, 4, v6")
    e("  v_lshl_add_u32 v6, v13, 7, v6")
    e("  s_lshl_b32 s48, s26, 12")
    e("  v_add_u32 v4, s48, v6")
    e("  v_xor_b32 v5, 64, v4")
    e("  v_add_u32 v2, 65536, v4")
    e("  v_add_u32 v3, 65536, v5")
    e("  v_bfe_u32 v6, v1, 2, 2")
    e("  v_and_b32 v7, 1, v14")
    e("  v_lshlrev_b32 v7, 1, v7")
    e("  v_lshrrev_b32 v8, 1, v6")
    e("  v_or_b32 v7, v7, v8")
    e("  v_lshlrev_b32 v7, 1, v7")
    e("  v_bfe_u32 v8, v1, 1, 1")
    e("  v_lshlrev_b32 v9, 10, v14")
    e("  v_lshl_add_u32 v9, v6, 7, v9")
    e("  v_and_b32 v6, 1, v1")
    e("  v_lshl_add_u32 v9, v6, 3, v9")
    e("  s_lshl_b32 s48, s25, 2")
    for nb in range(2):
        e(f"  s_add_u32 s49, s48, {2*nb}")
        e("  v_add_u32 v6, s49, v8")
        e("  v_xor_b32 v6, v6, v7")
        e(f"  v_lshl_add_u32 v{10+nb}, v6, 4, v9")
        e(f"  v_add_u32 v{100+nb}, 65536, v{10+nb}")
    for r in range(16, 48):
        e(f"  v_mov_b32 v{r}, 0")
    e("  s_lshl_b32 s48, s28, 6")
    e("  s_lshl_b32 s49, s26, 5")
    e("  s_add_u32 s48, s48, s49")
    e("  v_add_u32 v104, s48, v13")
    e("  v_lshlrev_b32 v105, 2, v104")
    def rd_list(k, u):
        sl = k % K3_NS; st = (k * 2 + u) % 3; b = FR + st * 16
        so = (sl % 4) * 16384
        wa = 10 if sl < 4 else 100
        ta = 4 if sl < 4 else 2
        o = []
        for nb in range(2):
            for q in range(2):
                o.append(f"  ds_read_b64_tr_b16 {vr(b+4*nb+2*q,2)}, v{wa+nb} offset:{so + 8192 + u*4096 + q*512}")
        for tb in range(2):
            o.append(f"  ds_read_b128 {vr(b+8+4*tb)}, v{ta+u} offset:{so + tb*2048}")
        return o
    def mf_list(k, u):
        st = (k * 2 + u) % 3; b = FR + st * 16
        AC = ACA if k < 8 else ACB
        o = []
        for nb in range(2):
            for tb in range(2):
                a = AC + (nb * 2 + tb) * 4
                o.append(f"  v_mfma_f32_16x16x32_bf16 {vr(a)}, {vr(b+4*nb)}, {vr(b+8+4*tb)}, {vr(a)}")
        return o
    e("  s_barrier")
    stamp(1)
    for r in rd_list(0, 0) + rd_list(0, 1): e(r)
    for k in range(NK):
        if k == 4:
            e(f"  s_mov_b32 s48, {WS_G}")
            e("  buffer_load_dword v120, v105, s[20:23], s48 offen")
            e("  buffer_load_dword v121, v105, s[20:23], s48 offen offset:64")
        if k + 1 < NK:
            stamp(2 + 2*k)
            e("  s_barrier")
            stamp(3 + 2*k)
        for u in range(2):
            nx = rd_list(k + 1, u) if k + 1 < NK else []
            e(f"  s_waitcnt lgkmcnt({6 if (k + 1 < NK or u == 0) else 0})")
            interleave(mf_list(k, u), nx)
    e("  s_waitcnt vmcnt(0)")
    e("  s_nop 7")
    e("  v_sub_f32 v122, 1.0, v120")
    e("  v_sub_f32 v123, 1.0, v121")
    e("  v_lshlrev_b32 v105, 10, v104")
    e("  v_lshl_add_u32 v105, v14, 3, v105")
    e("  s_lshl_b32 s48, s29, 7")
    e("  s_lshl_b32 s49, s25, 6")
    e("  s_add_u32 s48, s48, s49")
    for nb in range(2):
        for tb in range(2):
            a = ACA + (nb * 2 + tb) * 4
            b = ACB + (nb * 2 + tb) * 4
            for r in range(4):
                e(f"  v_mul_f32 v{a+r}, v{a+r}, v{120+tb}")
            for r in range(4):
                e(f"  v_fmac_f32 v{a+r}, v{b+r}, v{122+tb}")
            e(f"  v_cvt_pk_bf16_f32 v{a}, v{a}, v{a+1}")
            e(f"  v_cvt_pk_bf16_f32 v{a+1}, v{a+2}, v{a+3}")
            e(f"  s_add_u32 s49, s48, {tb*16*1024}")
            e(f"  buffer_store_dwordx2 {vr(a,2)}, v105, s[52:55], s49 offen offset:{nb*32}")
    stamp(60)
    stamp_flush(20)
    e("  s_endpgm")
    e("k3_load:")
    srd(12, 4, 512 * 1024)
    srd(16, 6, 688 * 1024)
    e("  s_sub_u32 s25, s24, 4")
    e("  v_lshrrev_b32 v4, 3, v1")
    e("  v_and_b32 v5, 7, v1")
    e("  v_xor_b32 v5, v5, v4")
    e("  v_lshlrev_b32 v5, 4, v5")
    e("  v_lshl_add_u32 v2, v4, 10, v5")
    e("  v_mul_u32_u24 v3, 1408, v4")
    e("  v_add_u32 v3, v3, v5")
    e("  s_and_b32 s48, s25, 1")
    e("  s_lshl_b32 s48, s48, 2")
    e("  v_lshrrev_b32 v5, 4, v1")
    e("  v_and_b32 v5, 1, v5")
    e("  v_lshlrev_b32 v5, 1, v5")
    e("  v_or_b32 v5, s48, v5")
    e("  v_and_b32 v6, 7, v1")
    e("  v_xor_b32 v5, v5, v6")
    e("  v_lshlrev_b32 v5, 4, v5")
    e("  v_lshl_add_u32 v15, v4, 10, v5")
    e("  s_lshl_b32 s48, s28, 6")
    e("  s_lshl_b32 s49, s25, 3")
    e("  s_add_u32 s48, s48, s49")
    e("  s_lshl_b32 s32, s48, 10")
    e(f"  s_add_u32 s32, s32, {WS_O}")
    e("  s_mul_i32 s33, s48, 1408")
    e(f"  s_add_u32 s33, s33, {WS_U}")
    e("  s_lshl_b32 s34, s25, 13")
    e("  s_lshl_b32 s48, s29, 7")
    e("  s_add_u32 s34, s34, s48")
    e("  s_lshl_b32 s35, s25, 10")
    q = []
    def issue(k):
        so = (k % K3_NS) * 16384
        for hf in range(2):
            e(f"  s_add_u32 m0, s35, {so + hf*4096}")
            if k < 8:
                e(f"  s_add_u32 s42, s32, {k*128 + hf*32*1024}")
                e("  buffer_load_dwordx4 v2, s[20:23], s42 offen lds")
            else:
                e(f"  s_add_u32 s42, s33, {(k-8)*128 + hf*32*1408}")
                e("  buffer_load_dwordx4 v3, s[20:23], s42 offen lds")
            q.append(k)
        for hf in range(2):
            e(f"  s_add_u32 m0, s35, {so + 8192 + hf*4096}")
            kk = k if k < 8 else k - 8
            e(f"  s_add_u32 s42, s34, {kk*65536 + hf*32*1024}")
            e(f"  buffer_load_dwordx4 v15, s[{12 if k < 8 else 16}:{15 if k < 8 else 19}], s42 offen lds")
            q.append(k)
    def wait_for(k):
        idx = max(i for i, o in enumerate(q) if o == k)
        e(f"  s_waitcnt vmcnt({min(63, len(q) - 1 - idx)})")
    def bar(k):
        e("  s_barrier")
    sched(NK, K3_NS, issue, wait_for, bar, lag=2)
    e("k3_end:")
    e("  s_endpgm")
    return kd(name, 128)

def header(launches):
    ref = open("cdna_kernels/%s.s.ref" % NAME).read().splitlines()
    for l in ref:
        if l.startswith("; @launch") or not l.startswith(";"): break
        if "Override launch" in l or "grid=ceil" in l: continue
        e(l)
    for l in launches: e(l)
    e('.amdgcn_target "amdgcn-amd-amdhsa--gfx950"')
    e(".text")

if __name__ == "__main__":
    which = sys.argv[1] if len(sys.argv) > 1 else "all"
    launches = [f"; @launch kernel=k1_kernel grid=(256,1,1) block=(768,1,1) lds={K1_LDS}",
                f"; @launch kernel=k2_kernel grid=(256,1,1) block=(512,1,1) lds={K2_LDS}",
                f"; @launch kernel={NAME}_kernel grid=(256,1,1) block=(512,1,1) lds={K3_LDS}"]
    header(launches)
    kds = [gen_k1(), gen_k2(), gen_k3()]
    e('.section .rodata,"a"')
    for k in kds:
        e(".p2align 6")
        e(k)
    dst = sys.argv[2] if len(sys.argv) > 2 else "k.s"
    open(dst, "w").write("\n".join(out) + "\n")
    print("wrote", dst, len(out), "lines")
```

```python
import sys, struct, os
EXP = os.environ.get("EXP", "")
PF0 = int(os.environ.get("PF0", "1"))
PFZ = int(os.environ.get("PFZ", "1"))
PK = int(os.environ.get("PK", "14"))
PA = int(os.environ.get("PA", "10"))
NAME = "gated_mix__sliding_local_dilated__mixer_gmlp__prompt"
out = []
def e(s=""): out.append(s)
_lbl = [0]
def L(p="L"):
    _lbl[0] += 1
    return f"{p}_{_lbl[0]}"
def f2u(x): return struct.unpack("<I", struct.pack("<f", x))[0]
def fx(x): return "0x%08x" % f2u(x)

WS_Z = 0
WS_O = 8 << 20
WS_U = 12 << 20
WS_ST = 16 << 20
WS_G = 17 << 20
WS_Z2 = 20 << 20
WS_Z1 = 24 << 20
WS_SIZE = 268435456
LOG2E = 1.4426950408889634
GC0 = 2 * 0.7978845608028654 * LOG2E
GC1 = GC0 * 0.044715

def srd(s, base, size):
    e(f"  s_mov_b32 s{s}, s{base}")
    e(f"  s_and_b32 s{s+1}, s{base+1}, 0xffff")
    e(f"  s_mov_b32 s{s+2}, {size}")
    e(f"  s_mov_b32 s{s+3}, 0x00020000")

def kernel_begin(name):
    e(f".globl {name}")
    e(".p2align 8")
    e(f".type {name},@function")
    e(f"{name}:")

def kd(name, vgpr, sgpr=96):
    v = (vgpr + 7) // 8 * 8
    return f""".amdhsa_kernel {name}
  .amdhsa_next_free_vgpr {v}
  .amdhsa_next_free_sgpr {sgpr}
  .amdhsa_accum_offset {v}
  .amdhsa_group_segment_fixed_size 0
  .amdhsa_kernarg_size 96
  .amdhsa_user_sgpr_count 2
  .amdhsa_user_sgpr_kernarg_segment_ptr 1
  .amdhsa_system_sgpr_workgroup_id_x 1
.end_amdhsa_kernel"""

STAMP = "stamp" in EXP
def stamp(i, vreg=127):
    if not STAMP: return
    e("  s_memtime s[90:91]")
    e("  s_waitcnt lgkmcnt(0)")
    e(f"  v_writelane_b32 v{vreg}, s90, {i}")
def rstamp(i, vreg):
    if not STAMP: return
    e("  s_memrealtime s[90:91]")
    e("  s_waitcnt lgkmcnt(0)")
    e(f"  v_writelane_b32 v{vreg}, s90, {i}")
def stamp_flush(srd, vreg=127, tmp=126, mb=32):
    if not STAMP: return
    rstamp(63, vreg)
    e("  s_lshl_b32 s90, s2, 4")
    e("  s_add_u32 s90, s90, s24")
    e("  s_lshl_b32 s90, s90, 8")
    e(f"  s_add_u32 s90, s90, {mb<<20}")
    e(f"  v_and_b32 v{tmp}, 63, v0")
    e(f"  v_lshlrev_b32 v{tmp}, 2, v{tmp}")
    e(f"  buffer_store_dword v{vreg}, v{tmp}, s[{srd}:{srd+3}], s90 offen")

def vr(b, n=4): return f"v[{b}:{b+n-1}]"

K1_STAGE = 43008
K1Z_STAGE = 16384 + 12288
K1Z_NS = 4
K1Z_ST = K1Z_NS * K1Z_STAGE
K1_LDS = 3 * K1_STAGE
SV = 163

def gelu_pk(regs, tmp, vc1, vone):
    n = len(regs)
    for i, r in enumerate(regs):
        e(f"  v_pk_mul_f32 {vr(tmp+2*i,2)}, {vr(r,2)}, {vr(r,2)}")
    for i, r in enumerate(regs):
        e(f"  v_pk_fma_f32 {vr(tmp+2*i,2)}, {vr(tmp+2*i,2)}, {vr(vc1,2)}, {vr(vc1+2,2)}")
    for i, r in enumerate(regs):
        e(f"  v_pk_mul_f32 {vr(tmp+2*i,2)}, {vr(tmp+2*i,2)}, {vr(r,2)}")
    for i in range(2 * n):
        e(f"  v_exp_f32 v{tmp+i}, v{tmp+i}")
    e("  s_nop 0")
    for i, r in enumerate(regs):
        e(f"  v_pk_add_f32 {vr(tmp+2*i,2)}, {vr(tmp+2*i,2)}, {vr(vone,2)}")
    for i in range(2 * n):
        e(f"  v_rcp_f32 v{tmp+i}, v{tmp+i}")
    e("  s_nop 0")
    for i, r in enumerate(regs):
        e(f"  v_pk_mul_f32 {vr(r,2)}, {vr(r,2)}, {vr(tmp+2*i,2)}")

def k1_prefetch(z=False):
    if "nopf" in EXP: return
    if not z:
        e("  s_load_dwordx2 s[76:77], s[0:1], 16")
        e("  s_load_dwordx2 s[78:79], s[0:1], 40")
        e("  s_load_dwordx2 s[80:81], s[0:1], 56")
    e("  s_lshl_b32 s48, s2, 3")
    e("  s_add_u32 s48, s48, s24")
    e("  s_lshl_b32 s75, s48, 10")
    e("  v_lshlrev_b32 v160, 4, v1")
    e("  buffer_load_dwordx4 v[164:167], v160, s[12:15], s75 offen")
    srd(84, 6, 512 * 3072)
    e("  buffer_load_dwordx4 v[164:167], v160, s[84:87], s75 offen")
    srd(84, 8, 512 * 2752)
    e("  buffer_load_dwordx4 v[164:167], v160, s[84:87], s75 offen")
    if not z: e("  s_waitcnt lgkmcnt(0)")
def k1_prefetch_step(i):
    if "nopf" in EXP: return
    srd(84, 78, 2048 * 4096)
    e(f"  s_add_u32 s48, s75, {i << 20}")
    e(f"  buffer_load_dwordx4 v[164:167], v160, s[84:87], s48 offen")
    if i == 6:
        srd(84, 76, 512 * 1024)
        e("  buffer_load_dwordx4 v[164:167], v160, s[84:87], s75 offen")
    if i == 7:
        srd(84, 80, 688 * 1024)
        e("  buffer_load_dwordx4 v[164:167], v160, s[84:87], s75 offen")

def gen_k1():
    name = "k1_kernel"
    kernel_begin(name)
    e("  s_cmp_ge_u32 s2, 256")
    e("  s_cbranch_scc1 k1_end")
    if STAMP: e(f"  v_mov_b32 v{SV}, 0")
    stamp(0, SV)
    rstamp(59, SV)
    e("  s_load_dwordx4 s[4:7], s[0:1], 0")
    e("  s_load_dwordx2 s[8:9], s[0:1], 32")
    e("  s_load_dwordx2 s[10:11], s[0:1], 64")
    e("  s_load_dwordx4 s[60:63], s[0:1], 80")
    e("  v_and_b32 v1, 63, v0")
    e("  v_lshrrev_b32 v2, 6, v0")
    e("  s_nop 0")
    e("  v_readfirstlane_b32 s24, v2")
    e("  s_and_b32 s46, s2, 7")
    e("  s_lshr_b32 s47, s2, 3")
    e("  s_lshr_b32 s27, s47, 4")
    e("  s_lshr_b32 s28, s47, 1")
    e("  s_and_b32 s28, s28, 7")
    e("  s_lshr_b32 s48, s46, 2")
    e("  s_lshl_b32 s48, s48, 3")
    e("  s_add_u32 s28, s28, s48")
    e("  s_and_b32 s29, s46, 3")
    e("  s_lshl_b32 s29, s29, 1")
    e("  s_and_b32 s48, s47, 1")
    e("  s_add_u32 s29, s29, s48")
    e("  v_and_b32 v13, 15, v1")
    e("  v_lshrrev_b32 v14, 4, v1")
    e("  s_waitcnt lgkmcnt(0)")
    srd(12, 4, 2048 * 1024)
    srd(20, 62, WS_SIZE)
    e("  s_cmp_ge_u32 s24, 8")
    e("  s_cbranch_scc1 k1_load")
    e("  s_cmp_eq_u32 s27, 0")
    e("  s_cbranch_scc0 k1_zc")
    k1_prefetch()
    ACC = 16; XF = 76; WF = 116
    def acc(j, bi): return ACC + (j * 5 + bi) * 4
    def xf(u, bi): return XF + (u * 5 + bi) * 4
    def wf(u, j): return WF + (u * 3 + j) * 4
    e("  s_and_b32 s25, s24, 3")
    e("  s_lshr_b32 s26, s24, 2")
    e("  s_cmp_eq_u32 s26, 0")
    e("  s_cselect_b32 s31, 1, 0")
    e("  v_and_b32 v15, 7, v13")
    e("  v_xor_b32 v15, v15, v14")
    e("  v_lshlrev_b32 v15, 4, v15")
    e("  v_lshl_add_u32 v15, v13, 7, v15")
    e("  s_lshl_b32 s48, s26, 13")
    e("  v_add_u32 v4, s48, v15")
    e("  v_xor_b32 v7, 64, v4")
    for st in range(1, 3):
        e(f"  v_add_u32 v{4+st}, {st*K1_STAGE}, v4")
        e(f"  v_add_u32 v{7+st}, {st*K1_STAGE}, v7")
    e("  v_bfe_u32 v15, v1, 2, 2")
    e("  v_and_b32 v10, 1, v14")
    e("  v_lshlrev_b32 v10, 1, v10")
    e("  v_lshrrev_b32 v11, 1, v15")
    e("  v_or_b32 v10, v10, v11")
    e("  v_lshlrev_b32 v10, 1, v10")
    e("  v_bfe_u32 v11, v1, 1, 1")
    e("  s_lshl_b32 s48, s25, 1")
    e("  v_add_u32 v11, s48, v11")
    e("  v_xor_b32 v10, v10, v11")
    e("  v_lshlrev_b32 v10, 4, v10")
    e("  v_lshl_add_u32 v10, v14, 10, v10")
    e("  v_lshl_add_u32 v10, v15, 7, v10")
    e("  v_and_b32 v11, 1, v1")
    e("  v_lshl_add_u32 v10, v11, 3, v10")
    for st in range(1, 3):
        e(f"  v_add_u32 v{10+st}, {st*K1_STAGE}, v10")
    for r in range(ACC, ACC + 60):
        e(f"  v_mov_b32 v{r}, 0")
    def qreads(k, u):
        st = k % 3
        l = L("k1x")
        e("  s_cmp_eq_u32 s31, 0")
        e(f"  s_cbranch_scc1 {l}")
        e(f"  ds_read_b128 {vr(xf(u,4))}, v{4+3*u+st} offset:0")
        e(f"{l}:")
        for j in range(3):
            for q in range(2):
                e(f"  ds_read_b64_tr_b16 {vr(wf(u,j)+2*q,2)}, v{10+st} offset:{18432 + j*8192 + u*4096 + q*512}")
        for b in range(4):
            e(f"  ds_read_b128 {vr(xf(u,b))}, v{4+3*u+st} offset:{(1+b)*2048}")
    def qmfma(u):
        for j in range(3):
            for b in range(4):
                e(f"  v_mfma_f32_16x16x32_bf16 {vr(acc(j,b))}, {vr(wf(u,j))}, {vr(xf(u,b))}, {vr(acc(j,b))}")
        l = L("k1m")
        e("  s_cmp_eq_u32 s31, 0")
        e(f"  s_cbranch_scc1 {l}")
        for j in (1, 2):
            e(f"  v_mfma_f32_16x16x32_bf16 {vr(acc(j,4))}, {vr(wf(u,j))}, {vr(xf(u,4))}, {vr(acc(j,4))}")
        e(f"{l}:")
    if "notouch" not in EXP:
        e("  s_cmp_ge_u32 s24, 4")
        e("  s_cbranch_scc1 k1_tw%d" % 0)
        e("  s_lshl_b32 s48, s27, 1")
        e("  s_and_b32 s49, s47, 1")
        e("  s_add_u32 s48, s48, s49")
        e("  s_lshl_b32 s48, s48, 5")
        e("  s_lshl_b32 s49, s24, 3")
        e("  s_add_u32 s48, s48, s49")
        e("  s_lshl_b32 s49, s28, 7")
        e("  s_add_u32 s48, s48, s49")
        e("  s_lshl_b32 s48, s48, 10")
        e("  v_lshrrev_b32 v161, 3, v1")
        e("  v_and_b32 v162, 7, v1")
        e("  v_lshlrev_b32 v162, 7, v162")
        e("  v_lshl_add_u32 v161, v161, 10, v162")
        e("  buffer_load_dword v160, v161, s[12:15], s48 offen")
        e("  s_branch k1_td%d" % 0)
        e("k1_tw%d:" % 0)
        e("  s_and_b32 s48, s28, 7")
        e("  s_lshl_b32 s48, s48, 6")
        e("  v_add_u32 v161, s48, v1")
        srd(16, 6, 512 * 3072)
        e("  v_mul_u32_u24 v161, 3072, v161")
        e("  s_sub_u32 s48, s24, 4")
        e("  s_min_u32 s48, s48, 2")
        e("  s_lshl_b32 s48, s48, 10")
        e("  s_lshl_b32 s49, s29, 7")
        e("  s_add_u32 s48, s48, s49")
        e("  buffer_load_dword v160, v161, s[16:19], s48 offen")
        e("k1_td0:")
    e("  s_barrier")
    stamp(1, SV)
    qreads(0, 0)
    for k in range(8):
        if "pf2" in EXP:
            if k < 4:
                k1_prefetch_step(2*k); k1_prefetch_step(2*k+1)
        else:
            k1_prefetch_step(k)
        qreads(k, 1)
        e("  s_waitcnt lgkmcnt(10)")
        qmfma(0)
        e("  s_waitcnt lgkmcnt(0)")
        if k < 7:
            stamp(2 + 2*k, SV)
            e("  s_barrier")
            stamp(3 + 2*k, SV)
            qreads(k + 1, 0)
        qmfma(1)
    e("  s_nop 7")
    e("  s_nop 7")
    stamp(30, SV)
    e("  s_barrier")
    stamp(31, SV)
    e("  s_mul_i32 s48, s25, 13824")
    e("  v_lshrrev_b32 v2, 1, v14")
    e("  v_mul_u32_u24 v2, 2304, v2")
    e("  v_and_b32 v3, 1, v14")
    e("  v_lshl_add_u32 v2, v3, 3, v2")
    e("  v_lshl_add_u32 v2, v13, 4, v2")
    e("  s_lshl_b32 s49, s26, 10")
    e("  s_add_u32 s48, s48, s49")
    e("  v_add_u32 v2, s48, v2")
    for j in range(3):
        for b in range(4):
            a = acc(j, b)
            e(f"  v_cvt_pk_bf16_f32 v{a}, v{a}, v{a+1}")
            e(f"  v_cvt_pk_bf16_f32 v{a+1}, v{a+2}, v{a+3}")
            e(f"  ds_write_b64 v2, {vr(a,2)} offset:{j*4608 + (1+b)*256}")
    l = L("k1w")
    e("  s_cmp_eq_u32 s31, 0")
    e(f"  s_cbranch_scc1 {l}")
    for j in (1, 2):
        a = acc(j, 4)
        e(f"  v_cvt_pk_bf16_f32 v{a}, v{a}, v{a+1}")
        e(f"  v_cvt_pk_bf16_f32 v{a+1}, v{a+2}, v{a+3}")
        e(f"  ds_write_b64 v2, {vr(a,2)} offset:{j*4608}")
    e(f"{l}:")
    e("  s_waitcnt lgkmcnt(0)")
    e("  s_barrier")
    e("  s_mul_i32 s48, s25, 13824")
    e("  s_lshl_b32 s49, s26, 10")
    e("  s_add_u32 s48, s48, s49")
    e("  s_add_u32 s48, s48, 32")
    e("  v_lshlrev_b32 v2, 4, v1")
    e("  v_add_u32 v2, s48, v2")
    Q = 16; KR = 24; VR = 24; LG = 88; OA = 96
    for p in range(2):
        e(f"  ds_read_b128 {vr(Q+4*p)}, v2 offset:{p*2304 + 224}")
    for w in range(8):
        for p in range(2):
            e(f"  ds_read_b128 {vr(KR+8*w+4*p)}, v2 offset:{(2+p)*2304 + (7-w)*32}")
    e("  s_lshl_b32 s48, s28, 7")
    e("  s_lshl_b32 s49, s26, 6")
    e("  s_add_u32 s48, s48, s49")
    e("  v_add_u32 v3, s48, v1")
    for w in range(8):
        e(f"  v_mov_b32 v{LG+w}, 0")
    e("  s_waitcnt lgkmcnt(0)")
    for i in range(8):
        for w in range(8):
            e(f"  v_dot2c_f32_bf16 v{LG+w}, v{Q+i}, v{KR+8*w+i}")
    for w in range(8):
        for p in range(2):
            e(f"  ds_read_b128 {vr(VR+8*w+4*p)}, v2 offset:{(4+p)*2304 + (7-w)*32}")
    e(f"  v_mov_b32 v4, {fx(-1e9)}")
    e(f"  s_mov_b32 s48, {fx(0.25*LOG2E)}")
    for w in range(8):
        e(f"  v_mul_f32 v{LG+w}, s48, v{LG+w}")
    for w in range(1, 8):
        e(f"  v_cmp_le_u32 vcc, {2*w}, v3")
        e("  s_nop 1")
        e(f"  v_cndmask_b32 v{LG+w}, v4, v{LG+w}, vcc")
    e(f"  v_max3_f32 v5, v{LG}, v{LG+1}, v{LG+2}")
    e(f"  v_max3_f32 v5, v5, v{LG+3}, v{LG+4}")
    e(f"  v_max3_f32 v5, v5, v{LG+5}, v{LG+6}")
    e(f"  v_max_f32 v5, v5, v{LG+7}")
    for w in range(8):
        e(f"  v_sub_f32 v{LG+w}, v{LG+w}, v5")
    for w in range(8):
        e(f"  v_exp_f32 v{LG+w}, v{LG+w}")
    e("  s_nop 0")
    e(f"  v_add_f32 v5, v{LG}, v{LG+1}")
    for w in range(2, 8):
        e(f"  v_add_f32 v5, v5, v{LG+w}")
    e("  v_rcp_f32 v5, v5")
    e("  s_nop 0")
    for w in range(8):
        e(f"  v_mul_f32 v{LG+w}, v{LG+w}, v5")
    for w in range(8):
        e(f"  v_cvt_pk_bf16_f32 v{LG+w}, v{LG+w}, 0")
    for i in range(16):
        e(f"  v_mov_b32 v{OA+i}, 0")
    e("  s_waitcnt lgkmcnt(0)")
    for w in range(8):
        e(f"  v_lshlrev_b32 v6, 16, v{LG+w}")
        for i in range(8):
            e(f"  v_dot2c_f32_bf16 v{OA+2*i}, v{VR+8*w+i}, v{LG+w}")
            e(f"  v_dot2c_f32_bf16 v{OA+2*i+1}, v{VR+8*w+i}, v6")
    e("  s_nop 2")
    for i in range(8):
        e(f"  v_cvt_pk_bf16_f32 v{Q+i}, v{OA+2*i}, v{OA+2*i+1}")
    e("  s_lshl_b32 s48, s29, 2")
    e("  s_add_u32 s48, s48, s25")
    e("  s_lshl_b32 s48, s48, 5")
    e(f"  s_add_u32 s48, s48, {WS_O}")
    e("  v_lshlrev_b32 v3, 10, v3")
    e(f"  buffer_store_dwordx4 {vr(Q)}, v3, s[20:23], s48 offen")
    e(f"  buffer_store_dwordx4 {vr(Q+4)}, v3, s[20:23], s48 offen offset:16")
    stamp(40, SV)
    stamp_flush(20, SV, SV-1, 34)
    e("  s_endpgm")
    e("k1_zc:")
    k1_prefetch(True)
    A2 = 16; A1 = 40; FR = 64
    e("  s_and_b32 s25, s24, 3")
    e("  s_lshr_b32 s26, s24, 2")
    e("  s_mul_i32 s30, s29, 5")
    e("  s_min_u32 s48, s29, 3")
    e("  s_add_u32 s30, s30, s48")
    e("  s_cmp_lt_u32 s29, 3")
    e("  s_cselect_b32 s50, 6, 5")
    e("  s_mul_i32 s49, s26, 3")
    e("  s_add_u32 s49, s49, 2")
    e("  s_cmp_lt_u32 s49, s50")
    e("  s_cselect_b32 s57, 1, 0")
    e("  v_and_b32 v15, 7, v13")
    e("  v_xor_b32 v15, v15, v14")
    e("  v_lshlrev_b32 v15, 4, v15")
    e("  v_lshl_add_u32 v15, v13, 7, v15")
    e("  s_lshl_b32 s48, s25, 12")
    e("  v_add_u32 v104, s48, v15")
    e("  v_xor_b32 v105, 64, v104")
    e("  v_bfe_u32 v15, v1, 2, 2")
    e("  v_lshl_add_u32 v15, v14, 3, v15")
    e("  v_mul_u32_u24 v15, 192, v15")
    e("  v_and_b32 v6, 1, v1")
    e("  v_lshl_add_u32 v15, v6, 3, v15")
    e("  v_bfe_u32 v6, v1, 1, 1")
    e("  v_and_b32 v7, 1, v14")
    e("  v_lshlrev_b32 v7, 1, v7")
    e("  s_mul_i32 s48, s26, 6")
    for fb in range(3):
        e(f"  s_add_u32 s49, s48, {2*fb}")
        e(f"  v_add_u32 v8, s49, v6")
        e(f"  v_xor_b32 v8, v8, v7")
        e(f"  v_lshl_add_u32 v8, v8, 4, v15")
        e(f"  v_add_u32 v{106+fb}, 16384, v8")
    for sl in range(1, K1Z_NS):
        for r in range(5):
            e(f"  v_add_u32 v{104+5*sl+r}, {sl*K1Z_STAGE}, v{104+r}")
    for r in range(A2, A2 + 48):
        e(f"  v_mov_b32 v{r}, 0")
    for r in (124, 125): e(f"  v_mov_b32 v{r}, {fx(-GC1)}")
    for r in (126, 127): e(f"  v_mov_b32 v{r}, {fx(-GC0)}")
    for r in (128, 129): e(f"  v_mov_b32 v{r}, 1.0")
    e("  s_lshl_b32 s48, s28, 7")
    e("  s_lshl_b32 s49, s25, 5")
    e("  s_add_u32 s48, s48, s49")
    e("  v_add_u32 v2, s48, v13")
    e("  s_movk_i32 s48, 2752")
    e("  v_mul_lo_u32 v2, v2, s48")
    e("  v_lshl_add_u32 v2, v14, 3, v2")
    e("  s_mul_i32 s49, s26, 3")
    e("  s_add_u32 s49, s49, s30")
    e("  s_lshl_b32 s58, s49, 5")
    e(f"  s_add_u32 s58, s58, {WS_Z}")
    e("  s_lshl_b32 s48, s28, 7")
    e("  s_lshl_b32 s49, s25, 5")
    e("  s_add_u32 s48, s48, s49")
    e("  v_add_u32 v3, s48, v13")
    e("  v_mul_u32_u24 v3, 192, v3")
    e("  v_lshl_add_u32 v3, v14, 3, v3")
    e("  s_mul_i32 s56, s29, 393216")
    e("  s_mul_i32 s49, s26, 96")
    e("  s_add_u32 s56, s56, s49")
    e(f"  s_add_u32 s56, s56, {WS_Z2}")
    def zreads(k, u):
        sl = k % K1Z_NS; st = (k * 2 + u) % 2; b = FR + st * 20
        for fb in range(3):
            for q in range(2):
                e(f"  ds_read_b64_tr_b16 {vr(b+4*fb+2*q,2)}, v{106+5*sl+fb} offset:{u*32*192 + q*768}")
        for tb in range(2):
            e(f"  ds_read_b128 {vr(b+12+4*tb)}, v{104+5*sl+u} offset:{tb*2048}")
    def zmfma(k, u):
        st = (k * 2 + u) % 2; b = FR + st * 20
        AC = A2 if k < 8 else A1
        for fb in range(3):
            for tb in range(2):
                a = AC + (fb * 2 + tb) * 4
                e(f"  v_mfma_f32_16x16x32_bf16 {vr(a)}, {vr(b+4*fb)}, {vr(b+12+4*tb)}, {vr(a)}")
    def cond_fb2(fn):
        l = L("k1z")
        e("  s_cmp_eq_u32 s57, 0")
        e(f"  s_cbranch_scc1 {l}")
        fn()
        e(f"{l}:")
    TMP = 130
    def gelu_fb(AC, fb):
        regs = []
        for tb in range(2):
            a = AC + (fb * 2 + tb) * 4
            regs += [a, a + 2]
        gelu_pk(regs, TMP, 124, 128)
    def store_fb(AC, fb, colofs, norm):
        for tb in range(2):
            a = AC + (fb * 2 + tb) * 4
            if norm:
                for r in range(4):
                    e(f"  v_fma_f32 v{a+r}, v{a+r}, v{140+2*tb}, -v{141+2*tb}")
            e(f"  v_cvt_pk_bf16_f32 v{a}, v{a}, v{a+1}")
            e(f"  v_cvt_pk_bf16_f32 v{a+1}, v{a+2}, v{a+3}")
            if norm:
                e(f"  s_add_u32 s48, s56, {tb*16*192}")
                e(f"  buffer_store_dwordx2 {vr(a,2)}, v3, s[20:23], s48 offen offset:{fb*32}")
            else:
                e(f"  s_add_u32 s48, s58, {colofs + tb*16*2752}")
                e(f"  buffer_store_dwordx2 {vr(a,2)}, v2, s[20:23], s48 offen offset:{fb*32}")
    def stat_fb(fb):
        for tb in range(2):
            a = A2 + (fb * 2 + tb) * 4
            for r in range(4):
                e(f"  v_add_f32 v{140+2*tb}, v{140+2*tb}, v{a+r}")
                e(f"  v_fmac_f32 v{141+2*tb}, v{a+r}, v{a+r}")
    srd(64, 60, 256)
    e("  s_memrealtime s[90:91]")
    e("  s_waitcnt lgkmcnt(0)")
    e("  s_or_b32 s54, s90, 1")
    e("  v_mov_b32 v138, s54")
    e("  v_mov_b32 v139, 0")
    e("  v_mov_b32 v161, 0")
    e("  s_lshl_b32 s59, s28, 2")
    lwn = L("k1n")
    e("  s_cmp_ge_u32 s24, 1")
    e(f"  s_cbranch_scc1 {lwn}")
    e("  s_mov_b64 exec, 1")
    e("  buffer_atomic_cmpswap v[138:139], v161, s[64:67], s59 offen offset:64 sc0 sc1")
    e("  s_mov_b64 exec, -1")
    e(f"{lwn}:")
    if "notouch" not in EXP:
        e("  s_cmp_ge_u32 s24, 4")
        e("  s_cbranch_scc1 k1_tw%d" % 1)
        e("  s_lshl_b32 s48, s27, 1")
        e("  s_and_b32 s49, s47, 1")
        e("  s_add_u32 s48, s48, s49")
        e("  s_lshl_b32 s48, s48, 5")
        e("  s_lshl_b32 s49, s24, 3")
        e("  s_add_u32 s48, s48, s49")
        e("  s_lshl_b32 s49, s28, 7")
        e("  s_add_u32 s48, s48, s49")
        e("  s_lshl_b32 s48, s48, 10")
        e("  v_lshrrev_b32 v161, 3, v1")
        e("  v_and_b32 v162, 7, v1")
        e("  v_lshlrev_b32 v162, 7, v162")
        e("  v_lshl_add_u32 v161, v161, 10, v162")
        e("  buffer_load_dword v160, v161, s[12:15], s48 offen")
        e("  s_branch k1_td%d" % 1)
        e("k1_tw%d:" % 1)
        e("  s_and_b32 s48, s28, 7")
        e("  s_lshl_b32 s48, s48, 6")
        e("  v_add_u32 v161, s48, v1")
        srd(16, 8, 512 * 2752)
        e("  s_movk_i32 s49, 2752")
        e("  v_mul_lo_u32 v161, v161, s49")
        e("  s_lshl_b32 s48, s30, 5")
        e("  s_and_b32 s49, s24, 1")
        e("  s_lshl_b32 s49, s49, 7")
        e("  s_add_u32 s48, s48, s49")
        e("  s_cmp_lt_u32 s24, 6")
        e("  s_cselect_b32 s49, 1376, 0")
        e("  s_add_u32 s48, s48, s49")
        e("  buffer_load_dword v160, v161, s[16:19], s48 offen")
        e("  buffer_load_dword v160, v161, s[16:19], s48 offen offset:60")
        e("k1_td1:")
    e("  s_barrier")
    stamp(1, SV)
    zreads(0, 0)
    for k in range(16):
        zreads(k, 1)
        e("  s_waitcnt lgkmcnt(8)")
        zmfma(k, 0)
        e("  s_waitcnt lgkmcnt(0)")
        if k < 15:
            if k < 12: stamp(2 + 2*k, SV)
            e("  s_barrier")
            if k < 12: stamp(3 + 2*k, SV)
            zreads(k + 1, 0)
        zmfma(k, 1)
        if k == 7:
            e("  s_nop 7")
            e("  s_nop 7")
            stamp(30, SV)
            for r in range(140, 144): e(f"  v_mov_b32 v{r}, 0")
            for fb in range(2):
                gelu_fb(A2, fb); stat_fb(fb)
            cond_fb2(lambda: (gelu_fb(A2, 2), stat_fb(2)))
            e("  s_lshl_b32 s48, s26, 12")
            e("  s_lshl_b32 s49, s25, 8")
            e("  s_add_u32 s48, s48, s49")
            e(f"  s_add_u32 s48, s48, {K1Z_ST}")
            e("  v_lshlrev_b32 v4, 10, v14")
            e("  v_lshl_add_u32 v4, v13, 3, v4")
            e("  v_add_u32 v4, s48, v4")
            for tb in range(2):
                e(f"  ds_write_b64 v4, {vr(140+2*tb,2)} offset:{tb*128}")
            lwn = L("k1n")
            e("  s_cmp_ge_u32 s24, 1")
            e(f"  s_cbranch_scc1 {lwn}")
            e("  s_waitcnt vmcnt(0)")
            e("  v_readfirstlane_b32 s53, v138")
            e("  s_cmp_eq_u32 s53, 0")
            e("  s_cselect_b32 s54, s54, s53")
            e("  v_mov_b32 v5, s54")
            e(f"  v_mov_b32 v6, {K1Z_ST + 9216}")
            e("  ds_write_b32 v6, v5")
            e(f"{lwn}:")
            e("  s_waitcnt lgkmcnt(0)")
            e("  s_barrier")
            lw = L("k1p")
            e("  s_cmp_ge_u32 s24, 2")
            e(f"  s_cbranch_scc1 {lw}")
            e("  v_lshlrev_b32 v4, 3, v0")
            e(f"  v_add_u32 v4, {K1Z_ST}, v4")
            for t in range(8):
                e(f"  ds_read_b64 {vr(144+2*t,2)}, v4 offset:{t*1024}")
            e("  s_waitcnt lgkmcnt(0)")
            for t in range(1, 8):
                e(f"  v_add_f32 v144, v144, v{144+2*t}")
                e(f"  v_add_f32 v145, v145, v{145+2*t}")
            e(f"  v_mov_b32 v6, {K1Z_ST + 9216}")
            e("  ds_read_b32 v147, v6")
            e("  v_mov_b32 v146, v145")
            e("  s_waitcnt lgkmcnt(0)")
            e("  v_mov_b32 v145, v147")
            e("  s_lshl_b32 s48, s28, 7")
            e("  v_add_u32 v4, s48, v0")
            e("  v_lshlrev_b32 v4, 4, v4")
            e("  s_lshl_b32 s48, s29, 15")
            e(f"  s_add_u32 s48, s48, {WS_ST}")
            e("  buffer_store_dwordx4 v[144:147], v4, s[20:23], s48 offen sc0 sc1")
            e(f"{lw}:")
            stamp(31, SV)
    e("  s_nop 7")
    e("  s_nop 7")
    stamp(32, SV)
    e("  s_lshl_b32 s48, s25, 5")
    e("  v_add_u32 v4, s48, v13")
    e("  v_mul_u32_u24 v4, 192, v4")
    e("  v_lshl_add_u32 v4, v14, 3, v4")
    e("  s_mul_i32 s48, s26, 96")
    e("  v_add_u32 v4, s48, v4")
    def lds_fb(AC, fb, base, norm):
        for tb in range(2):
            a = AC + (fb * 2 + tb) * 4
            if norm:
                for r in range(4):
                    e(f"  v_fma_f32 v{a+r}, v{a+r}, v{140+2*tb}, -v{141+2*tb}")
            e(f"  v_cvt_pk_bf16_f32 v{a}, v{a}, v{a+1}")
            e(f"  v_cvt_pk_bf16_f32 v{a+1}, v{a+2}, v{a+3}")
            e(f"  ds_write_b64 v4, {vr(a,2)} offset:{base + tb*16*192 + fb*32}")
    for fb in range(2):
        gelu_fb(A1, fb); lds_fb(A1, fb, 0, False)
    cond_fb2(lambda: (gelu_fb(A1, 2), lds_fb(A1, 2, 0, False)))
    e("  s_waitcnt lgkmcnt(0)")
    stamp(33, SV)
    e("  s_barrier")
    stamp(34, SV)
    e("  s_lshl_b32 s48, s25, 8")
    e(f"  s_add_u32 s48, s48, {K1Z_ST + 8192}")
    e("  v_lshlrev_b32 v5, 3, v13")
    e("  v_add_u32 v5, s48, v5")
    for tb in range(2):
        e(f"  ds_read_b64 {vr(140+2*tb,2)}, v5 offset:{tb*128}")
    e("  s_mul_i32 s48, s24, 3072")
    e("  v_lshlrev_b32 v6, 4, v1")
    e("  v_add_u32 v6, s48, v6")
    for j in range(3):
        e(f"  ds_read_b128 {vr(64+4*j)}, v6 offset:{j*1024}")
    e("  s_mul_i32 s56, s29, 393216")
    e("  s_mul_i32 s49, s28, 24576")
    e("  s_add_u32 s56, s56, s49")
    e("  s_waitcnt lgkmcnt(3)")
    for fb in range(2):
        lds_fb(A2, fb, K1Z_STAGE, True)
    cond_fb2(lambda: lds_fb(A2, 2, K1Z_STAGE, True))
    e("  s_waitcnt lgkmcnt(0)")
    e("  s_barrier")
    e(f"  s_add_u32 s48, s56, {WS_Z1}")
    for j in range(3):
        e(f"  buffer_store_dwordx4 {vr(64+4*j)}, v6, s[20:23], s48 offen offset:{j*1024}")
    for j in range(3):
        e(f"  ds_read_b128 {vr(80+4*j)}, v6 offset:{K1Z_STAGE + j*1024}")
    e("  s_waitcnt lgkmcnt(0)")
    e(f"  s_add_u32 s48, s56, {WS_Z2}")
    for j in range(3):
        e(f"  buffer_store_dwordx4 {vr(80+4*j)}, v6, s[20:23], s48 offen offset:{j*1024}")
    stamp(40, SV)
    stamp_flush(20, SV, SV-1, 34)
    e("  s_endpgm")
    e("k1_load:")
    e("  s_sub_u32 s25, s24, 8")
    e("  v_lshrrev_b32 v4, 3, v1")
    e("  v_and_b32 v5, 7, v1")
    e("  v_xor_b32 v5, v5, v4")
    e("  v_lshlrev_b32 v5, 4, v5")
    e("  v_lshl_add_u32 v2, v4, 10, v5")
    e("  s_lshl_b32 s35, s25, 10")
    e("  s_cmp_eq_u32 s27, 0")
    e("  s_cbranch_scc0 k1_lz")
    srd(16, 6, 512 * 3072)
    e("  s_and_b32 s48, s25, 1")
    e("  s_lshl_b32 s48, s48, 2")
    e("  v_lshrrev_b32 v5, 4, v1")
    e("  v_and_b32 v5, 1, v5")
    e("  v_lshlrev_b32 v5, 1, v5")
    e("  v_or_b32 v5, s48, v5")
    e("  v_and_b32 v6, 7, v1")
    e("  v_xor_b32 v5, v5, v6")
    e("  v_lshlrev_b32 v5, 4, v5")
    e("  v_mul_u32_u24 v3, 3072, v4")
    e("  v_add_u32 v3, v3, v5")
    e(f"  s_mul_i32 s36, s25, {8*3072}")
    e("  s_lshl_b32 s48, s29, 7")
    e("  s_add_u32 s36, s36, s48")
    e("  s_lshl_b32 s48, s28, 17")
    e("  s_lshl_b32 s49, s25, 13")
    e("  s_add_u32 s32, s48, s49")
    e("  s_sub_u32 s32, s32, 16384")
    e("  s_cmp_lt_i32 s32, 0")
    e("  s_cselect_b32 s33, 0, s32")
    e("  s_cmp_lt_u32 s25, 2")
    e("  s_cselect_b32 s43, 1, 0")
    q = []
    def qissue(k):
        sb = (k % 3) * K1_STAGE
        for j in range(3):
            for ii in range(2):
                e(f"  s_add_u32 m0, s35, {sb + 18432 + j*8192 + ii*4096}")
                e(f"  s_add_u32 s42, s36, {k*64*3072 + j*1024 + ii*32*3072}")
                e("  buffer_load_dwordx4 v3, s[16:19], s42 offen lds"); q.append(k)
        for m in range(4):
            e(f"  s_add_u32 m0, s35, {sb + m*4096}")
            e(f"  s_add_u32 s42, s{33 if m == 0 else 32}, {k*128 + m*32*1024}")
            e("  buffer_load_dwordx4 v2, s[12:15], s42 offen lds"); q.append(k)
        l = L("k1h")
        e("  s_cmp_eq_u32 s43, 0")
        e(f"  s_cbranch_scc1 {l}")
        e(f"  s_add_u32 m0, s35, {sb + 16384}")
        e(f"  s_add_u32 s42, s32, {k*128 + 128*1024}")
        e("  buffer_load_dwordx4 v2, s[12:15], s42 offen lds")
        e(f"{l}:")
    def wait_for(k):
        idx = max(i for i, o in enumerate(q) if o == k)
        e(f"  s_waitcnt vmcnt({min(63, len(q) - 1 - idx)})")
    def gate_load(qq):
        srd(52, 10, 1024)
        e("  s_lshl_b32 s74, s2, 3")
        e("  s_lshl_b32 s49, s25, 1")
        e("  s_add_u32 s74, s74, s49")
        e("  s_lshl_b32 s49, s74, 10")
        e("  v_lshlrev_b32 v8, 4, v1")
        e("  buffer_load_dwordx4 v[140:143], v8, s[12:15], s49 offen")
        e("  buffer_load_dwordx4 v[148:151], v8, s[12:15], s49 offen offset:1024")
        e("  buffer_load_dwordx4 v[144:147], v8, s[52:55], 0 offen")
        qq += ["g", "g", "g"]
    def gate(qq):
        for rr in range(2):
            e(f"  v_mov_b32 v{152+rr}, 0")
            for i in range(4):
                e(f"  v_dot2c_f32_bf16 v{152+rr}, v{140+8*rr+i}, v{144+i}")
        e("  s_nop 3")
        for sh in (8, 4, 2, 1):
            for rr in range(2):
                e(f"  v_add_f32_dpp v{152+rr}, v{152+rr}, v{152+rr} row_ror:{sh} row_mask:0xf bank_mask:0xf")
            e("  s_nop 1")
        for rr in range(2):
            e(f"  v_readlane_b32 s70, v{152+rr}, 0")
            e(f"  v_readlane_b32 s71, v{152+rr}, 16")
            e(f"  v_readlane_b32 s72, v{152+rr}, 32")
            e(f"  v_readlane_b32 s73, v{152+rr}, 48")
            e("  s_nop 1")
            e(f"  v_mov_b32 v{154+rr}, s70")
            e(f"  v_add_f32 v{154+rr}, s71, v{154+rr}")
            e(f"  v_add_f32 v{154+rr}, s72, v{154+rr}")
            e(f"  v_add_f32 v{154+rr}, s73, v{154+rr}")
            e(f"  v_mul_f32 v{154+rr}, {fx(-LOG2E)}, v{154+rr}")
            e(f"  v_exp_f32 v{154+rr}, v{154+rr}")
            e("  s_nop 0")
            e(f"  v_add_f32 v{154+rr}, 1.0, v{154+rr}")
            e(f"  v_rcp_f32 v{154+rr}, v{154+rr}")
        e("  s_lshl_b32 s48, s74, 2")
        e(f"  s_add_u32 s48, s48, {WS_G}")
        e("  v_mov_b32 v9, 0")
        e("  s_mov_b64 exec, 1")
        e("  buffer_store_dwordx2 v[154:155], v9, s[20:23], s48 offen")
        e("  s_mov_b64 exec, -1")
        qq.append("g")
    stamp(1, SV)
    for k in range(2):
        qissue(k); stamp(2 + k, SV)
    stamp(5, SV)
    for k in range(8):
        wait_for(k)
        stamp(6 + 3*k, SV)
        e("  s_barrier")
        stamp(7 + 3*k, SV)
        if k + 2 < 8: qissue(k + 2)
        if k == 0: gate_load(q)
        if k == 4: gate(q)
        stamp(8 + 3*k, SV)
    stamp_flush(20, SV, SV-1, 34)
    e("  s_endpgm")
    e("k1_lz:")
    srd(16, 8, 512 * 2752)
    for p in range(3):
        e(f"  v_add_u32 v6, {64*p}, v1")
        e("  v_mul_u32_u24 v3, 0x5556, v6")
        e("  v_lshrrev_b32 v3, 18, v3")
        e("  v_mul_u32_u24 v4, 12, v3")
        e("  v_sub_u32 v4, v6, v4")
        e("  v_bfe_u32 v5, v3, 3, 1")
        e("  v_lshlrev_b32 v5, 1, v5")
        e("  v_xor_b32 v4, v4, v5")
        e("  s_movk_i32 s48, 2752")
        e("  v_mul_lo_u32 v3, v3, s48")
        e(f"  v_lshl_add_u32 v{20+p}, v4, 4, v3")
    e("  s_mul_i32 s30, s29, 5")
    e("  s_min_u32 s48, s29, 3")
    e("  s_add_u32 s30, s30, s48")
    e("  s_lshl_b32 s48, s30, 5")
    e(f"  s_mul_i32 s49, s25, {16*2752}")
    e("  s_add_u32 s36, s48, s49")
    e("  s_mul_i32 s37, s25, 3072")
    e("  s_add_u32 s37, s37, 16384")
    e("  s_lshl_b32 s48, s28, 17")
    e("  s_lshl_b32 s49, s25, 13")
    e("  s_add_u32 s32, s48, s49")
    q2 = []
    def zissue(s_):
        sb = (s_ % K1Z_NS) * K1Z_STAGE
        k = s_ & 7
        co = 1376 if s_ < 8 else 0
        for p in range(3):
            e(f"  s_add_u32 m0, s37, {sb + p*1024}")
            e(f"  s_add_u32 s42, s36, {k*64*2752 + co}")
            e(f"  buffer_load_dwordx4 v{20+p}, s[16:19], s42 offen lds"); q2.append(s_)
        for m in range(4):
            e(f"  s_add_u32 m0, s35, {sb + m*4096}")
            e(f"  s_add_u32 s42, s32, {k*128 + m*32*1024}")
            e("  buffer_load_dwordx4 v2, s[12:15], s42 offen lds"); q2.append(s_)
    def wait2(k):
        idx = max(i for i, o in enumerate(q2) if o == k)
        e(f"  s_waitcnt vmcnt({min(63, len(q2) - 1 - idx)})")
    srd(64, 60, 256)
    e("  v_subrev_u32 v24, 512, v0")
    e("  s_lshl_b32 s48, s28, 7")
    e("  v_add_u32 v25, s48, v24")
    e("  v_lshlrev_b32 v25, 4, v25")
    e("  s_memrealtime s[90:91]")
    e("  s_waitcnt lgkmcnt(0)")
    e("  s_or_b32 s54, s90, 1")
    e("  v_mov_b32 v158, s54")
    e("  v_mov_b32 v159, 0")
    e("  v_mov_b32 v157, 0")
    def gran_loads():
        for pl in range(8):
            e(f"  s_mov_b32 s48, {WS_ST + pl*32768}")
            e(f"  buffer_load_dwordx4 {vr(64+4*pl)}, v25, s[20:23], s48 offen sc0 sc1")
    for k in range(2): zissue(k)
    for k in range(16):
        if k == 15:
            lw = L("k1p"); lw2 = L("k1p")
            e("  s_cmp_ge_u32 s25, 2")
            e(f"  s_cbranch_scc1 {lw}")
            e("  s_waitcnt vmcnt(8)")
            e(f"  s_branch {lw2}")
            e(f"{lw}:")
            wait2(k)
            e(f"{lw2}:")
        else:
            wait2(k)
        e("  s_barrier")
        if k == 0:
            zissue(2); zissue(3); gate_load(q2)
        if k >= 1 and k - 1 + K1Z_NS < 16: zissue(k - 1 + K1Z_NS)
        if k == 5: gate(q2)
        if k == 8:
            e("  s_barrier")
            e(f"  v_mov_b32 v6, {K1Z_ST + 9216}")
            e("  ds_read_b32 v158, v6")
            e("  s_waitcnt lgkmcnt(0)")
        if k == PK:
            lw = L("k1p")
            e("  s_cmp_ge_u32 s25, 2")
            e(f"  s_cbranch_scc1 {lw}")
            gran_loads()
            e(f"{lw}:")
    lw = L("k1p")
    e("  s_cmp_ge_u32 s25, 2")
    e(f"  s_cbranch_scc1 {lw}")
    e("  v_readfirstlane_b32 s54, v158")
    e("  s_mov_b32 s52, 0")
    stamp(3, SV)
    e("k1_poll:")
    e("  s_waitcnt vmcnt(0)")
    e("  v_xor_b32 v5, s54, v65")
    for pl in range(8):
        for hh in (1, 3):
            if pl == 0 and hh == 1: continue
            e(f"  v_xor_b32 v6, s54, v{64+4*pl+hh}")
            e("  v_or_b32 v5, v5, v6")
    e("  v_cmp_ne_u32 vcc, 0, v5")
    e("  s_add_u32 s52, s52, 1")
    e("  s_cbranch_vccz k1_got")
    e("  s_cmp_lt_u32 s52, 0x40000")
    e("  s_cbranch_scc0 k1_got")
    e("  s_sleep 2")
    gran_loads()
    e("  s_branch k1_poll")
    e("k1_got:")
    stamp(5, SV)
    if STAMP: e(f"  v_writelane_b32 v{SV}, s52, 58")
    for t in range(1, 8):
        e(f"  v_add_f32 v64, v64, v{64+4*t}")
        e(f"  v_add_f32 v66, v66, v{66+4*t}")
    e(f"  v_mul_f32 v144, {fx(1.0/688)}, v64")
    e(f"  v_mul_f32 v145, {fx(1.0/688)}, v66")
    e("  v_fma_f32 v145, -v144, v144, v145")
    e("  v_max_f32 v145, 0, v145")
    e(f"  v_add_f32 v145, {fx(1e-5)}, v145")
    e("  v_rsq_f32 v146, v145")
    e("  s_nop 0")
    e("  v_mul_f32 v147, v144, v146")
    e("  v_lshlrev_b32 v4, 3, v24")
    e(f"  v_add_u32 v4, {K1Z_ST + 8192}, v4")
    e(f"  ds_write_b64 v4, v[146:147]")
    e("  s_waitcnt lgkmcnt(0)")
    e(f"{lw}:")
    stamp(7, SV)
    stamp_flush(20, SV, SV-1, 34)
    e("  s_barrier")
    e("k1_end:")
    e("  s_endpgm")
    return kd(name, 168)

K2_NS = 8
K2_ZOFF = K2_NS * 8192
K2_LDS = K2_ZOFF + K2_NS * 12288
K2_NIT = 32
def sched(n, ns, issue, wait, bar, extra=None, burst=2, lag=1):
    nxt = 0
    for k in range(min(2, n)):
        issue(k); nxt = k + 1
    for k in range(n):
        wait(k)
        bar(k)
        lim = min(n, k - 1 + ns + (1 if k == 0 else 0))
        lim = min(n, max(k - 1, -1) + ns + 1) if k == 0 else min(n, k - 1 + ns + 0)
        c = 0
        while nxt < n and nxt <= max(k - lag, -1) + ns and c < burst:
            issue(nxt); nxt += 1; c += 1
        if extra: extra(k)

def gen_k2():
    name = "k2_kernel"
    kernel_begin(name)
    e("  s_cmp_ge_u32 s2, 256")
    e("  s_cbranch_scc1 k2_end")
    if STAMP: e("  v_mov_b32 v126, 0")
    stamp(0, 126)
    rstamp(59, 126)
    e("  s_load_dwordx4 s[4:7], s[0:1], 40")
    e("  s_load_dwordx2 s[8:9], s[0:1], 88")
    e("  v_and_b32 v1, 63, v0")
    e("  v_lshrrev_b32 v2, 6, v0")
    e("  s_nop 0")
    e("  v_readfirstlane_b32 s24, v2")
    e("  s_and_b32 s46, s2, 7")
    e("  s_lshr_b32 s47, s2, 3")
    e("  s_lshr_b32 s28, s46, 1")
    e("  s_lshl_b32 s28, s28, 3")
    e("  s_lshr_b32 s48, s47, 2")
    e("  s_add_u32 s28, s28, s48")
    e("  s_and_b32 s29, s46, 1")
    e("  s_lshl_b32 s29, s29, 2")
    e("  s_and_b32 s48, s47, 3")
    e("  s_add_u32 s29, s29, s48")
    e("  s_mul_i32 s30, s29, 5")
    e("  s_min_u32 s48, s29, 3")
    e("  s_add_u32 s30, s30, s48")
    e("  s_waitcnt lgkmcnt(0)")
    srd(12, 4, 2048 * 4096)
    srd(16, 6, 4096)
    srd(20, 8, WS_SIZE)
    e("  s_cmp_ge_u32 s24, 4")
    e("  s_cbranch_scc1 k2_prod")
    e("  s_and_b32 s25, s24, 1")
    e("  s_lshr_b32 s26, s24, 1")
    e("  v_and_b32 v13, 15, v1")
    e("  v_lshrrev_b32 v14, 4, v1")
    ACC = 16
    FR = 40
    e("  v_and_b32 v15, 7, v13")
    e("  v_xor_b32 v15, v15, v14")
    e("  v_lshlrev_b32 v15, 4, v15")
    e("  v_lshl_add_u32 v15, v13, 7, v15")
    e("  s_lshl_b32 s48, s26, 12")
    e("  v_add_u32 v122, s48, v15")
    e("  v_xor_b32 v123, 64, v122")
    e("  v_bfe_u32 v15, v1, 2, 2")
    e("  v_lshl_add_u32 v15, v14, 3, v15")
    e("  v_mul_u32_u24 v15, 192, v15")
    e("  v_and_b32 v6, 1, v1")
    e("  v_lshl_add_u32 v15, v6, 3, v15")
    e("  v_bfe_u32 v6, v1, 1, 1")
    e("  v_and_b32 v7, 1, v14")
    e("  v_lshlrev_b32 v7, 1, v7")
    e("  s_mul_i32 s48, s25, 6")
    for fb in range(3):
        e(f"  s_add_u32 s49, s48, {2*fb}")
        e(f"  v_add_u32 v8, s49, v6")
        e(f"  v_xor_b32 v8, v8, v7")
        e(f"  v_lshl_add_u32 v8, v8, 4, v15")
        e(f"  v_add_u32 v{2+fb}, {K2_ZOFF}, v8")
        e(f"  v_add_u32 v{9+fb}, {K2_ZOFF + 4*12288}, v8")
    for r in range(ACC, ACC + 24):
        e(f"  v_mov_b32 v{r}, 0")
    e("  s_lshl_b32 s48, s28, 6")
    e("  s_lshl_b32 s49, s26, 5")
    e("  s_add_u32 s48, s48, s49")
    e("  v_add_u32 v104, s48, v13")
    e("  v_lshlrev_b32 v105, 1, v104")
    e("  v_mul_u32_u24 v106, 192, v104")
    e("  v_lshl_add_u32 v106, v14, 3, v106")
    e("  s_mul_i32 s49, s25, 3")
    e("  s_add_u32 s49, s49, s30")
    e("  s_lshl_b32 s31, s49, 5")
    e("  s_mul_i32 s51, s29, 393216")
    e("  s_mul_i32 s49, s25, 96")
    e("  s_add_u32 s51, s51, s49")
    e(f"  s_add_u32 s51, s51, {WS_Z1}")
    def epi_prefetch():
        e("  buffer_load_ushort v120, v105, s[16:19], 0 offen")
        e("  buffer_load_ushort v121, v105, s[16:19], 0 offen offset:32")
        for tb in range(2):
            for fb in range(3):
                e(f"  s_add_u32 s49, s51, {tb*16*192}")
                e(f"  buffer_load_dwordx2 {vr(108+2*(tb*3+fb),2)}, v106, s[20:23], s49 offen offset:{fb*32}")
    def rd_list(k, u):
        sl = k % K2_NS; st = (k * 2 + u) % 3; b = FR + st * 20
        zb = 2 if sl < 4 else 9
        o = []
        for fb in range(3):
            for q in range(2):
                o.append(f"  ds_read_b64_tr_b16 {vr(b+4*fb+2*q,2)}, v{zb+fb} offset:{(sl%4)*12288 + u*32*192 + q*768}")
        for tb in range(2):
            o.append(f"  ds_read_b128 {vr(b+12+4*tb)}, v{122+u} offset:{sl*8192 + tb*2048}")
        return o
    def mf_list(k, u):
        st = (k * 2 + u) % 3; b = FR + st * 20
        o = []
        for fb in range(3):
            for tb in range(2):
                a = ACC + (fb * 2 + tb) * 4
                o.append(f"  v_mfma_f32_16x16x32_bf16 {vr(a)}, {vr(b+4*fb)}, {vr(b+12+4*tb)}, {vr(a)}")
        return o
    def interleave(ms, rs):
        ri = 0
        for i, m in enumerate(ms):
            e(m)
            take = (len(rs) - ri + (len(ms) - i) - 1) // (len(ms) - i)
            for _ in range(take):
                e(rs[ri]); ri += 1
    e("  s_barrier")
    stamp(1, 126)
    for r in rd_list(0, 0) + rd_list(0, 1): e(r)
    for k in range(K2_NIT):
        if k == 8: epi_prefetch()
        if k + 1 < K2_NIT:
            if k < 24: stamp(2 + 2*k, 126)
            e("  s_barrier")
            if k < 24: stamp(3 + 2*k, 126)
        for u in range(2):
            nx = rd_list(k + 1, u) if k + 1 < K2_NIT else []
            e(f"  s_waitcnt lgkmcnt({8 if (k + 1 < K2_NIT or u == 0) else 0})")
            interleave(mf_list(k, u), nx)
    e("  s_waitcnt vmcnt(0)")
    e("  s_nop 7")
    e("  v_lshlrev_b32 v120, 16, v120")
    e("  v_lshlrev_b32 v121, 16, v121")
    e("  s_movk_i32 s48, 1408")
    e("  v_mul_lo_u32 v105, v104, s48")
    e("  v_lshl_add_u32 v105, v14, 3, v105")
    e(f"  s_add_u32 s31, s31, {WS_U}")
    e("  s_cmp_lt_u32 s29, 3")
    e("  s_cselect_b32 s50, 6, 5")
    for fb in range(3):
        lskip = L("k2e")
        if fb == 2:
            e("  s_mul_i32 s49, s25, 3")
            e("  s_add_u32 s49, s49, 2")
            e("  s_cmp_lt_u32 s49, s50")
            lval = L("k2v")
            e(f"  s_cbranch_scc1 {lval}")
            e("  s_cmp_eq_u32 s29, 7")
            e(f"  s_cbranch_scc0 {lskip}")
            for tb in range(2):
                a = ACC + (fb * 2 + tb) * 4
                e(f"  v_mov_b32 v{a}, 0")
                e(f"  v_mov_b32 v{a+1}, 0")
                e(f"  s_add_u32 s49, s31, {tb*16*1408}")
                e(f"  buffer_store_dwordx2 {vr(a,2)}, v105, s[20:23], s49 offen offset:{fb*32}")
            e(f"  s_branch {lskip}")
            e(f"{lval}:")
        for tb in range(2):
            a = ACC + (fb * 2 + tb) * 4
            z = 108 + 2 * (tb * 3 + fb)
            e(f"  v_lshlrev_b32 v60, 16, v{z}")
            e(f"  v_and_b32 v61, 0xffff0000, v{z}")
            e(f"  v_lshlrev_b32 v62, 16, v{z+1}")
            e(f"  v_and_b32 v63, 0xffff0000, v{z+1}")
            for r in range(4):
                e(f"  v_add_f32 v{a+r}, v{a+r}, v{120+tb}")
            for r in range(4):
                e(f"  v_mul_f32 v{a+r}, v{a+r}, v{60+r}")
            e(f"  v_cvt_pk_bf16_f32 v{a}, v{a}, v{a+1}")
            e(f"  v_cvt_pk_bf16_f32 v{a+1}, v{a+2}, v{a+3}")
            e(f"  s_add_u32 s49, s31, {tb*16*1408}")
            e(f"  buffer_store_dwordx2 {vr(a,2)}, v105, s[20:23], s49 offen offset:{fb*32}")
        e(f"{lskip}:")
    stamp(60, 126)
    stamp_flush(20, 126, 124, 33)
    e("  s_endpgm")
    e("k2_prod:")
    e("  s_sub_u32 s25, s24, 4")
    e("  v_lshrrev_b32 v10, 3, v1")
    e("  v_and_b32 v11, 7, v1")
    e("  v_xor_b32 v11, v11, v10")
    e("  v_lshlrev_b32 v11, 4, v11")
    e("  v_lshl_add_u32 v10, v10, 12, v11")
    e("  s_lshl_b32 s48, s28, 18")
    e("  s_lshl_b32 s49, s25, 15")
    e("  s_add_u32 s33, s48, s49")
    e("  s_lshl_b32 s35, s25, 10")
    for p in range(3):
        e(f"  v_add_u32 v2, {64*p}, v1")
        e("  v_mul_u32_u24 v3, 0x5556, v2")
        e("  v_lshrrev_b32 v3, 18, v3")
        e("  v_mul_u32_u24 v4, 12, v3")
        e("  v_sub_u32 v4, v2, v4")
        e("  v_bfe_u32 v5, v3, 3, 1")
        e("  v_lshlrev_b32 v5, 1, v5")
        e("  v_xor_b32 v4, v4, v5")
        e("  v_mul_u32_u24 v3, 192, v3")
        e(f"  v_lshl_add_u32 v{20+p}, v4, 4, v3")
    e("  s_mul_i32 s48, s29, 393216")
    e(f"  s_mul_i32 s49, s25, {16*192}")
    e("  s_add_u32 s32, s48, s49")
    e(f"  s_add_u32 s32, s32, {WS_Z2}")
    e("  s_mul_i32 s36, s25, 3072")
    e(f"  s_add_u32 s36, s36, {K2_ZOFF}")
    q = []
    ROT = int(os.environ.get("ROT", "0"))
    e(f"  s_mul_i32 s37, s28, {ROT}")
    def dma(k):
        sl = k % K2_NS
        e(f"  s_add_u32 s38, s37, {k}")
        e("  s_and_b32 s38, s38, 31")
        e(f"  s_mul_i32 s39, s38, {64*192}")
        e("  s_add_u32 s39, s39, s32")
        e("  s_lshl_b32 s38, s38, 7")
        e("  s_add_u32 s38, s38, s33")
        for m in range(3):
            e(f"  s_add_u32 m0, s36, {sl*12288 + m*1024}")
            e(f"  buffer_load_dwordx4 v{20 + m}, s[20:23], s39 offen lds")
            q.append(k)
        for ii in range(2):
            e(f"  s_add_u32 m0, s35, {sl*8192 + ii*4096}")
            e(f"  s_add_u32 s42, s38, {ii*32*4096}")
            e("  buffer_load_dwordx4 v10, s[12:15], s42 offen lds")
            q.append(k)
    def wait_for(k):
        idx = max(i for i, o in enumerate(q) if o == k)
        e(f"  s_waitcnt vmcnt({min(63, len(q) - 1 - idx)})")
    def bar(k):
        if k < 24: stamp(2 + 2*k, 126)
        e("  s_barrier")
        if k < 24: stamp(3 + 2*k, 126)
    sched(K2_NIT, K2_NS, dma, wait_for, bar, lag=2)
    stamp(62, 126)
    stamp_flush(20, 126, 124, 33)
    e("k2_end:")
    e("  s_endpgm")
    return kd(name, 128)

K3_NS = 8
K3_LDS = K3_NS * 16384
def interleave(ms, rs):
    ri = 0
    for i, m in enumerate(ms):
        e(m)
        take = (len(rs) - ri + (len(ms) - i) - 1) // (len(ms) - i)
        for _ in range(take):
            e(rs[ri]); ri += 1
def gen_k3():
    name = NAME + "_kernel"
    NK = 19
    kernel_begin(name)
    e("  s_cmp_ge_u32 s2, 256")
    e("  s_cbranch_scc1 k3_end")
    if STAMP: e("  v_mov_b32 v127, 0")
    stamp(0)
    rstamp(59, 127)
    e("  s_load_dwordx2 s[4:5], s[0:1], 16")
    e("  s_load_dwordx2 s[6:7], s[0:1], 56")
    e("  s_load_dwordx2 s[8:9], s[0:1], 72")
    e("  s_load_dwordx2 s[10:11], s[0:1], 88")
    e("  v_and_b32 v1, 63, v0")
    e("  v_lshrrev_b32 v2, 6, v0")
    e("  s_nop 0")
    e("  v_readfirstlane_b32 s24, v2")
    e("  s_and_b32 s46, s2, 7")
    e("  s_lshr_b32 s47, s2, 3")
    e("  s_lshr_b32 s28, s46, 1")
    e("  s_lshl_b32 s28, s28, 3")
    e("  s_lshr_b32 s48, s47, 2")
    e("  s_add_u32 s28, s28, s48")
    e("  s_and_b32 s29, s46, 1")
    e("  s_lshl_b32 s29, s29, 2")
    e("  s_and_b32 s48, s47, 3")
    e("  s_add_u32 s29, s29, s48")
    e("  v_and_b32 v13, 15, v1")
    e("  v_lshrrev_b32 v14, 4, v1")
    e("  s_waitcnt lgkmcnt(0)")
    srd(20, 10, WS_SIZE)
    e("  s_cmp_ge_u32 s24, 4")
    e("  s_cbranch_scc1 k3_load")
    srd(52, 8, 2048 * 1024)
    e("  s_and_b32 s25, s24, 1")
    e("  s_lshr_b32 s26, s24, 1")
    ACA = 16; ACB = 32; FR = 48
    e("  v_and_b32 v6, 7, v13")
    e("  v_xor_b32 v6, v6, v14")
    e("  v_lshlrev_b32 v6, 4, v6")
    e("  v_lshl_add_u32 v6, v13, 7, v6")
    e("  s_lshl_b32 s48, s26, 12")
    e("  v_add_u32 v4, s48, v6")
    e("  v_xor_b32 v5, 64, v4")
    e("  v_add_u32 v2, 65536, v4")
    e("  v_add_u32 v3, 65536, v5")
    e("  v_bfe_u32 v6, v1, 2, 2")
    e("  v_and_b32 v7, 1, v14")
    e("  v_lshlrev_b32 v7, 1, v7")
    e("  v_lshrrev_b32 v8, 1, v6")
    e("  v_or_b32 v7, v7, v8")
    e("  v_lshlrev_b32 v7, 1, v7")
    e("  v_bfe_u32 v8, v1, 1, 1")
    e("  v_lshlrev_b32 v9, 10, v14")
    e("  v_lshl_add_u32 v9, v6, 7, v9")
    e("  v_and_b32 v6, 1, v1")
    e("  v_lshl_add_u32 v9, v6, 3, v9")
    e("  s_lshl_b32 s48, s25, 2")
    for nb in range(2):
        e(f"  s_add_u32 s49, s48, {2*nb}")
        e("  v_add_u32 v6, s49, v8")
        e("  v_xor_b32 v6, v6, v7")
        e(f"  v_lshl_add_u32 v{10+nb}, v6, 4, v9")
        e(f"  v_add_u32 v{100+nb}, 65536, v{10+nb}")
    for r in range(16, 48):
        e(f"  v_mov_b32 v{r}, 0")
    e("  s_lshl_b32 s48, s28, 6")
    e("  s_lshl_b32 s49, s26, 5")
    e("  s_add_u32 s48, s48, s49")
    e("  v_add_u32 v104, s48, v13")
    e("  v_lshlrev_b32 v105, 2, v104")
    def rd_list(k, u):
        sl = k % K3_NS; st = (k * 2 + u) % 3; b = FR + st * 16
        so = (sl % 4) * 16384
        wa = 10 if sl < 4 else 100
        ta = 4 if sl < 4 else 2
        o = []
        for nb in range(2):
            for q in range(2):
                o.append(f"  ds_read_b64_tr_b16 {vr(b+4*nb+2*q,2)}, v{wa+nb} offset:{so + 8192 + u*4096 + q*512}")
        for tb in range(2):
            o.append(f"  ds_read_b128 {vr(b+8+4*tb)}, v{ta+u} offset:{so + tb*2048}")
        return o
    def mf_list(k, u):
        st = (k * 2 + u) % 3; b = FR + st * 16
        AC = ACA if k < 8 else ACB
        o = []
        for nb in range(2):
            for tb in range(2):
                a = AC + (nb * 2 + tb) * 4
                o.append(f"  v_mfma_f32_16x16x32_bf16 {vr(a)}, {vr(b+4*nb)}, {vr(b+8+4*tb)}, {vr(a)}")
        return o
    e("  s_barrier")
    stamp(1)
    for r in rd_list(0, 0) + rd_list(0, 1): e(r)
    for k in range(NK):
        if k == 4:
            e(f"  s_mov_b32 s48, {WS_G}")
            e("  buffer_load_dword v120, v105, s[20:23], s48 offen")
            e("  buffer_load_dword v121, v105, s[20:23], s48 offen offset:64")
        if k + 1 < NK:
            stamp(2 + 2*k)
            e("  s_barrier")
            stamp(3 + 2*k)
        for u in range(2):
            nx = rd_list(k + 1, u) if k + 1 < NK else []
            e(f"  s_waitcnt lgkmcnt({6 if (k + 1 < NK or u == 0) else 0})")
            interleave(mf_list(k, u), nx)
    e("  s_waitcnt vmcnt(0)")
    e("  s_nop 7")
    e("  v_sub_f32 v122, 1.0, v120")
    e("  v_sub_f32 v123, 1.0, v121")
    e("  v_lshlrev_b32 v105, 10, v104")
    e("  v_lshl_add_u32 v105, v14, 3, v105")
    e("  s_lshl_b32 s48, s29, 7")
    e("  s_lshl_b32 s49, s25, 6")
    e("  s_add_u32 s48, s48, s49")
    for nb in range(2):
        for tb in range(2):
            a = ACA + (nb * 2 + tb) * 4
            b = ACB + (nb * 2 + tb) * 4
            for r in range(4):
                e(f"  v_mul_f32 v{a+r}, v{a+r}, v{120+tb}")
            for r in range(4):
                e(f"  v_fmac_f32 v{a+r}, v{b+r}, v{122+tb}")
            e(f"  v_cvt_pk_bf16_f32 v{a}, v{a}, v{a+1}")
            e(f"  v_cvt_pk_bf16_f32 v{a+1}, v{a+2}, v{a+3}")
            e(f"  s_add_u32 s49, s48, {tb*16*1024}")
            e(f"  buffer_store_dwordx2 {vr(a,2)}, v105, s[52:55], s49 offen offset:{nb*32}")
    stamp(60)
    stamp_flush(20)
    e("  s_endpgm")
    e("k3_load:")
    srd(12, 4, 512 * 1024)
    srd(16, 6, 688 * 1024)
    e("  s_sub_u32 s25, s24, 4")
    e("  v_lshrrev_b32 v4, 3, v1")
    e("  v_and_b32 v5, 7, v1")
    e("  v_xor_b32 v5, v5, v4")
    e("  v_lshlrev_b32 v5, 4, v5")
    e("  v_lshl_add_u32 v2, v4, 10, v5")
    e("  v_mul_u32_u24 v3, 1408, v4")
    e("  v_add_u32 v3, v3, v5")
    e("  s_and_b32 s48, s25, 1")
    e("  s_lshl_b32 s48, s48, 2")
    e("  v_lshrrev_b32 v5, 4, v1")
    e("  v_and_b32 v5, 1, v5")
    e("  v_lshlrev_b32 v5, 1, v5")
    e("  v_or_b32 v5, s48, v5")
    e("  v_and_b32 v6, 7, v1")
    e("  v_xor_b32 v5, v5, v6")
    e("  v_lshlrev_b32 v5, 4, v5")
    e("  v_lshl_add_u32 v15, v4, 10, v5")
    e("  s_lshl_b32 s48, s28, 6")
    e("  s_lshl_b32 s49, s25, 3")
    e("  s_add_u32 s48, s48, s49")
    e("  s_lshl_b32 s32, s48, 10")
    e(f"  s_add_u32 s32, s32, {WS_O}")
    e("  s_mul_i32 s33, s48, 1408")
    e(f"  s_add_u32 s33, s33, {WS_U}")
    e("  s_lshl_b32 s34, s25, 13")
    e("  s_lshl_b32 s48, s29, 7")
    e("  s_add_u32 s34, s34, s48")
    e("  s_lshl_b32 s35, s25, 10")
    q = []
    def issue(k):
        so = (k % K3_NS) * 16384
        for hf in range(2):
            e(f"  s_add_u32 m0, s35, {so + hf*4096}")
            if k < 8:
                e(f"  s_add_u32 s42, s32, {k*128 + hf*32*1024}")
                e("  buffer_load_dwordx4 v2, s[20:23], s42 offen lds")
            else:
                e(f"  s_add_u32 s42, s33, {(k-8)*128 + hf*32*1408}")
                e("  buffer_load_dwordx4 v3, s[20:23], s42 offen lds")
            q.append(k)
        for hf in range(2):
            e(f"  s_add_u32 m0, s35, {so + 8192 + hf*4096}")
            kk = k if k < 8 else k - 8
            e(f"  s_add_u32 s42, s34, {kk*65536 + hf*32*1024}")
            e(f"  buffer_load_dwordx4 v15, s[{12 if k < 8 else 16}:{15 if k < 8 else 19}], s42 offen lds")
            q.append(k)
    def wait_for(k):
        idx = max(i for i, o in enumerate(q) if o == k)
        e(f"  s_waitcnt vmcnt({min(63, len(q) - 1 - idx)})")
    def bar(k):
        e("  s_barrier")
    sched(NK, K3_NS, issue, wait_for, bar, lag=2)
    e("k3_end:")
    e("  s_endpgm")
    return kd(name, 128)

def header(launches):
    ref = open("cdna_kernels/%s.s.ref" % NAME).read().splitlines()
    for l in ref:
        if l.startswith("; @launch") or not l.startswith(";"): break
        if "Override launch" in l or "grid=ceil" in l: continue
        e(l)
    for l in launches: e(l)
    e('.amdgcn_target "amdgcn-amd-amdhsa--gfx950"')
    e(".text")

if __name__ == "__main__":
    which = sys.argv[1] if len(sys.argv) > 1 else "all"
    launches = [f"; @launch kernel=k1_kernel grid=(256,1,1) block=(768,1,1) lds={K1_LDS}",
                f"; @launch kernel=k2_kernel grid=(256,1,1) block=(512,1,1) lds={K2_LDS}",
                f"; @launch kernel={NAME}_kernel grid=(256,1,1) block=(512,1,1) lds={K3_LDS}"]
    header(launches)
    kds = [gen_k1(), gen_k2(), gen_k3()]
    e('.section .rodata,"a"')
    for k in kds:
        e(".p2align 6")
        e(k)
    dst = sys.argv[2] if len(sys.argv) > 2 else "k.s"
    open(dst, "w").write("\n".join(out) + "\n")
    print("wrote", dst, len(out), "lines")
```

```python
import sys, struct, os
EXP = os.environ.get("EXP", "")
PF0 = int(os.environ.get("PF0", "1"))
PFZ = int(os.environ.get("PFZ", "1"))
PK = int(os.environ.get("PK", "14"))
PA = int(os.environ.get("PA", "10"))
NAME = "gated_mix__sliding_local_dilated__mixer_gmlp__prompt"
out = []
def e(s=""): out.append(s)
_lbl = [0]
def L(p="L"):
    _lbl[0] += 1
    return f"{p}_{_lbl[0]}"
def f2u(x): return struct.unpack("<I", struct.pack("<f", x))[0]
def fx(x): return "0x%08x" % f2u(x)

WS_Z = 0
WS_O = 8 << 20
WS_U = 12 << 20
WS_ST = 16 << 20
WS_G = 17 << 20
WS_Z2 = 20 << 20
WS_Z1 = 24 << 20
WS_SIZE = 268435456
LOG2E = 1.4426950408889634
GC0 = 2 * 0.7978845608028654 * LOG2E
GC1 = GC0 * 0.044715

def srd(s, base, size):
    e(f"  s_mov_b32 s{s}, s{base}")
    e(f"  s_and_b32 s{s+1}, s{base+1}, 0xffff")
    e(f"  s_mov_b32 s{s+2}, {size}")
    e(f"  s_mov_b32 s{s+3}, 0x00020000")

def kernel_begin(name):
    e(f".globl {name}")
    e(".p2align 8")
    e(f".type {name},@function")
    e(f"{name}:")

def kd(name, vgpr, sgpr=96):
    v = (vgpr + 7) // 8 * 8
    return f""".amdhsa_kernel {name}
  .amdhsa_next_free_vgpr {v}
  .amdhsa_next_free_sgpr {sgpr}
  .amdhsa_accum_offset {v}
  .amdhsa_group_segment_fixed_size 0
  .amdhsa_kernarg_size 96
  .amdhsa_user_sgpr_count 2
  .amdhsa_user_sgpr_kernarg_segment_ptr 1
  .amdhsa_system_sgpr_workgroup_id_x 1
.end_amdhsa_kernel"""

STAMP = "stamp" in EXP
def stamp(i, vreg=127):
    if not STAMP: return
    e("  s_memtime s[90:91]")
    e("  s_waitcnt lgkmcnt(0)")
    e(f"  v_writelane_b32 v{vreg}, s90, {i}")
def rstamp(i, vreg):
    if not STAMP: return
    e("  s_memrealtime s[90:91]")
    e("  s_waitcnt lgkmcnt(0)")
    e(f"  v_writelane_b32 v{vreg}, s90, {i}")
def stamp_flush(srd, vreg=127, tmp=126, mb=32):
    if not STAMP: return
    rstamp(63, vreg)
    e("  s_lshl_b32 s90, s2, 4")
    e("  s_add_u32 s90, s90, s24")
    e("  s_lshl_b32 s90, s90, 8")
    e(f"  s_add_u32 s90, s90, {mb<<20}")
    e(f"  v_and_b32 v{tmp}, 63, v0")
    e(f"  v_lshlrev_b32 v{tmp}, 2, v{tmp}")
    e(f"  buffer_store_dword v{vreg}, v{tmp}, s[{srd}:{srd+3}], s90 offen")

def vr(b, n=4): return f"v[{b}:{b+n-1}]"

K1_STAGE = 43008
K1Z_STAGE = 16384 + 12288
K1Z_NS = 4
K1Z_ST = K1Z_NS * K1Z_STAGE
K1_LDS = 3 * K1_STAGE
SV = 163

def gelu_pk(regs, tmp, vc1, vone):
    n = len(regs)
    for i, r in enumerate(regs):
        e(f"  v_pk_mul_f32 {vr(tmp+2*i,2)}, {vr(r,2)}, {vr(r,2)}")
    for i, r in enumerate(regs):
        e(f"  v_pk_fma_f32 {vr(tmp+2*i,2)}, {vr(tmp+2*i,2)}, {vr(vc1,2)}, {vr(vc1+2,2)}")
    for i, r in enumerate(regs):
        e(f"  v_pk_mul_f32 {vr(tmp+2*i,2)}, {vr(tmp+2*i,2)}, {vr(r,2)}")
    for i in range(2 * n):
        e(f"  v_exp_f32 v{tmp+i}, v{tmp+i}")
    e("  s_nop 0")
    for i, r in enumerate(regs):
        e(f"  v_pk_add_f32 {vr(tmp+2*i,2)}, {vr(tmp+2*i,2)}, {vr(vone,2)}")
    for i in range(2 * n):
        e(f"  v_rcp_f32 v{tmp+i}, v{tmp+i}")
    e("  s_nop 0")
    for i, r in enumerate(regs):
        e(f"  v_pk_mul_f32 {vr(r,2)}, {vr(r,2)}, {vr(tmp+2*i,2)}")

def k1_prefetch(z=False):
    if "nopf" in EXP: return
    if not z:
        e("  s_load_dwordx2 s[76:77], s[0:1], 16")
        e("  s_load_dwordx2 s[78:79], s[0:1], 40")
        e("  s_load_dwordx2 s[80:81], s[0:1], 56")
    e("  s_lshl_b32 s48, s2, 3")
    e("  s_add_u32 s48, s48, s24")
    e("  s_lshl_b32 s75, s48, 10")
    e("  v_lshlrev_b32 v160, 4, v1")
    e("  buffer_load_dwordx4 v[164:167], v160, s[12:15], s75 offen")
    srd(84, 6, 512 * 3072)
    e("  buffer_load_dwordx4 v[164:167], v160, s[84:87], s75 offen")
    srd(84, 8, 512 * 2752)
    e("  buffer_load_dwordx4 v[164:167], v160, s[84:87], s75 offen")
    if not z: e("  s_waitcnt lgkmcnt(0)")
def k1_prefetch_step(i):
    if "nopf" in EXP: return
    srd(84, 78, 2048 * 4096)
    e(f"  s_add_u32 s48, s75, {i << 20}")
    e(f"  buffer_load_dwordx4 v[164:167], v160, s[84:87], s48 offen")
    if i == 6:
        srd(84, 76, 512 * 1024)
        e("  buffer_load_dwordx4 v[164:167], v160, s[84:87], s75 offen")
    if i == 7:
        srd(84, 80, 688 * 1024)
        e("  buffer_load_dwordx4 v[164:167], v160, s[84:87], s75 offen")

def gen_k1():
    name = "k1_kernel"
    kernel_begin(name)
    e("  s_cmp_ge_u32 s2, 256")
    e("  s_cbranch_scc1 k1_end")
    if STAMP: e(f"  v_mov_b32 v{SV}, 0")
    stamp(0, SV)
    rstamp(59, SV)
    e("  s_load_dwordx4 s[4:7], s[0:1], 0")
    e("  s_load_dwordx2 s[8:9], s[0:1], 32")
    e("  s_load_dwordx2 s[10:11], s[0:1], 64")
    e("  s_load_dwordx4 s[60:63], s[0:1], 80")
    e("  v_and_b32 v1, 63, v0")
    e("  v_lshrrev_b32 v2, 6, v0")
    e("  s_nop 0")
    e("  v_readfirstlane_b32 s24, v2")
    e("  s_and_b32 s46, s2, 7")
    e("  s_lshr_b32 s47, s2, 3")
    e("  s_lshr_b32 s27, s47, 4")
    e("  s_lshr_b32 s28, s47, 1")
    e("  s_and_b32 s28, s28, 7")
    e("  s_lshr_b32 s48, s46, 2")
    e("  s_lshl_b32 s48, s48, 3")
    e("  s_add_u32 s28, s28, s48")
    e("  s_and_b32 s29, s46, 3")
    e("  s_lshl_b32 s29, s29, 1")
    e("  s_and_b32 s48, s47, 1")
    e("  s_add_u32 s29, s29, s48")
    e("  v_and_b32 v13, 15, v1")
    e("  v_lshrrev_b32 v14, 4, v1")
    e("  s_waitcnt lgkmcnt(0)")
    srd(12, 4, 2048 * 1024)
    srd(20, 62, WS_SIZE)
    e("  s_cmp_ge_u32 s24, 8")
    e("  s_cbranch_scc1 k1_load")
    e("  s_cmp_eq_u32 s27, 0")
    e("  s_cbranch_scc0 k1_zc")
    k1_prefetch()
    ACC = 16; XF = 76; WF = 116
    def acc(j, bi): return ACC + (j * 5 + bi) * 4
    def xf(u, bi): return XF + (u * 5 + bi) * 4
    def wf(u, j): return WF + (u * 3 + j) * 4
    e("  s_and_b32 s25, s24, 3")
    e("  s_lshr_b32 s26, s24, 2")
    e("  s_cmp_eq_u32 s26, 0")
    e("  s_cselect_b32 s31, 1, 0")
    e("  v_and_b32 v15, 7, v13")
    e("  v_xor_b32 v15, v15, v14")
    e("  v_lshlrev_b32 v15, 4, v15")
    e("  v_lshl_add_u32 v15, v13, 7, v15")
    e("  s_lshl_b32 s48, s26, 13")
    e("  v_add_u32 v4, s48, v15")
    e("  v_xor_b32 v7, 64, v4")
    for st in range(1, 3):
        e(f"  v_add_u32 v{4+st}, {st*K1_STAGE}, v4")
        e(f"  v_add_u32 v{7+st}, {st*K1_STAGE}, v7")
    e("  v_bfe_u32 v15, v1, 2, 2")
    e("  v_and_b32 v10, 1, v14")
    e("  v_lshlrev_b32 v10, 1, v10")
    e("  v_lshrrev_b32 v11, 1, v15")
    e("  v_or_b32 v10, v10, v11")
    e("  v_lshlrev_b32 v10, 1, v10")
    e("  v_bfe_u32 v11, v1, 1, 1")
    e("  s_lshl_b32 s48, s25, 1")
    e("  v_add_u32 v11, s48, v11")
    e("  v_xor_b32 v10, v10, v11")
    e("  v_lshlrev_b32 v10, 4, v10")
    e("  v_lshl_add_u32 v10, v14, 10, v10")
    e("  v_lshl_add_u32 v10, v15, 7, v10")
    e("  v_and_b32 v11, 1, v1")
    e("  v_lshl_add_u32 v10, v11, 3, v10")
    for st in range(1, 3):
        e(f"  v_add_u32 v{10+st}, {st*K1_STAGE}, v10")
    for r in range(ACC, ACC + 60):
        e(f"  v_mov_b32 v{r}, 0")
    def qreads(k, u):
        st = k % 3
        l = L("k1x")
        e("  s_cmp_eq_u32 s31, 0")
        e(f"  s_cbranch_scc1 {l}")
        e(f"  ds_read_b128 {vr(xf(u,4))}, v{4+3*u+st} offset:0")
        e(f"{l}:")
        for j in range(3):
            for q in range(2):
                e(f"  ds_read_b64_tr_b16 {vr(wf(u,j)+2*q,2)}, v{10+st} offset:{18432 + j*8192 + u*4096 + q*512}")
        for b in range(4):
            e(f"  ds_read_b128 {vr(xf(u,b))}, v{4+3*u+st} offset:{(1+b)*2048}")
    def qmfma(u):
        for j in range(3):
            for b in range(4):
                e(f"  v_mfma_f32_16x16x32_bf16 {vr(acc(j,b))}, {vr(wf(u,j))}, {vr(xf(u,b))}, {vr(acc(j,b))}")
        l = L("k1m")
        e("  s_cmp_eq_u32 s31, 0")
        e(f"  s_cbranch_scc1 {l}")
        for j in (1, 2):
            e(f"  v_mfma_f32_16x16x32_bf16 {vr(acc(j,4))}, {vr(wf(u,j))}, {vr(xf(u,4))}, {vr(acc(j,4))}")
        e(f"{l}:")
    if "notouch" not in EXP:
        e("  s_cmp_ge_u32 s24, 4")
        e("  s_cbranch_scc1 k1_tw%d" % 0)
        e("  s_lshl_b32 s48, s27, 1")
        e("  s_and_b32 s49, s47, 1")
        e("  s_add_u32 s48, s48, s49")
        e("  s_lshl_b32 s48, s48, 5")
        e("  s_lshl_b32 s49, s24, 3")
        e("  s_add_u32 s48, s48, s49")
        e("  s_lshl_b32 s49, s28, 7")
        e("  s_add_u32 s48, s48, s49")
        e("  s_lshl_b32 s48, s48, 10")
        e("  v_lshrrev_b32 v161, 3, v1")
        e("  v_and_b32 v162, 7, v1")
        e("  v_lshlrev_b32 v162, 7, v162")
        e("  v_lshl_add_u32 v161, v161, 10, v162")
        e("  buffer_load_dword v160, v161, s[12:15], s48 offen")
        e("  s_branch k1_td%d" % 0)
        e("k1_tw%d:" % 0)
        e("  s_and_b32 s48, s28, 7")
        e("  s_lshl_b32 s48, s48, 6")
        e("  v_add_u32 v161, s48, v1")
        srd(16, 6, 512 * 3072)
        e("  v_mul_u32_u24 v161, 3072, v161")
        e("  s_sub_u32 s48, s24, 4")
        e("  s_min_u32 s48, s48, 2")
        e("  s_lshl_b32 s48, s48, 10")
        e("  s_lshl_b32 s49, s29, 7")
        e("  s_add_u32 s48, s48, s49")
        e("  buffer_load_dword v160, v161, s[16:19], s48 offen")
        e("k1_td0:")
    e("  s_barrier")
    stamp(1, SV)
    qreads(0, 0)
    for k in range(8):
        if "pf2" in EXP:
            if k < 4:
                k1_prefetch_step(2*k); k1_prefetch_step(2*k+1)
        else:
            k1_prefetch_step(k)
        qreads(k, 1)
        e("  s_waitcnt lgkmcnt(10)")
        qmfma(0)
        e("  s_waitcnt lgkmcnt(0)")
        if k < 7:
            stamp(2 + 2*k, SV)
            e("  s_barrier")
            stamp(3 + 2*k, SV)
            qreads(k + 1, 0)
        qmfma(1)
    e("  s_nop 7")
    e("  s_nop 7")
    stamp(30, SV)
    e("  s_barrier")
    stamp(31, SV)
    e("  s_mul_i32 s48, s25, 13824")
    e("  v_lshrrev_b32 v2, 1, v14")
    e("  v_mul_u32_u24 v2, 2304, v2")
    e("  v_and_b32 v3, 1, v14")
    e("  v_lshl_add_u32 v2, v3, 3, v2")
    e("  v_lshl_add_u32 v2, v13, 4, v2")
    e("  s_lshl_b32 s49, s26, 10")
    e("  s_add_u32 s48, s48, s49")
    e("  v_add_u32 v2, s48, v2")
    for j in range(3):
        for b in range(4):
            a = acc(j, b)
            e(f"  v_cvt_pk_bf16_f32 v{a}, v{a}, v{a+1}")
            e(f"  v_cvt_pk_bf16_f32 v{a+1}, v{a+2}, v{a+3}")
            e(f"  ds_write_b64 v2, {vr(a,2)} offset:{j*4608 + (1+b)*256}")
    l = L("k1w")
    e("  s_cmp_eq_u32 s31, 0")
    e(f"  s_cbranch_scc1 {l}")
    for j in (1, 2):
        a = acc(j, 4)
        e(f"  v_cvt_pk_bf16_f32 v{a}, v{a}, v{a+1}")
        e(f"  v_cvt_pk_bf16_f32 v{a+1}, v{a+2}, v{a+3}")
        e(f"  ds_write_b64 v2, {vr(a,2)} offset:{j*4608}")
    e(f"{l}:")
    e("  s_waitcnt lgkmcnt(0)")
    e("  s_barrier")
    e("  s_mul_i32 s48, s25, 13824")
    e("  s_lshl_b32 s49, s26, 10")
    e("  s_add_u32 s48, s48, s49")
    e("  s_add_u32 s48, s48, 32")
    e("  v_lshlrev_b32 v2, 4, v1")
    e("  v_add_u32 v2, s48, v2")
    Q = 16; KR = 24; VR = 24; LG = 88; OA = 96
    for p in range(2):
        e(f"  ds_read_b128 {vr(Q+4*p)}, v2 offset:{p*2304 + 224}")
    for w in range(8):
        for p in range(2):
            e(f"  ds_read_b128 {vr(KR+8*w+4*p)}, v2 offset:{(2+p)*2304 + (7-w)*32}")
    e("  s_lshl_b32 s48, s28, 7")
    e("  s_lshl_b32 s49, s26, 6")
    e("  s_add_u32 s48, s48, s49")
    e("  v_add_u32 v3, s48, v1")
    for w in range(8):
        e(f"  v_mov_b32 v{LG+w}, 0")
    e("  s_waitcnt lgkmcnt(0)")
    for i in range(8):
        for w in range(8):
            e(f"  v_dot2c_f32_bf16 v{LG+w}, v{Q+i}, v{KR+8*w+i}")
    for w in range(8):
        for p in range(2):
            e(f"  ds_read_b128 {vr(VR+8*w+4*p)}, v2 offset:{(4+p)*2304 + (7-w)*32}")
    e(f"  v_mov_b32 v4, {fx(-1e9)}")
    e(f"  s_mov_b32 s48, {fx(0.25*LOG2E)}")
    for w in range(8):
        e(f"  v_mul_f32 v{LG+w}, s48, v{LG+w}")
    for w in range(1, 8):
        e(f"  v_cmp_le_u32 vcc, {2*w}, v3")
        e("  s_nop 1")
        e(f"  v_cndmask_b32 v{LG+w}, v4, v{LG+w}, vcc")
    e(f"  v_max3_f32 v5, v{LG}, v{LG+1}, v{LG+2}")
    e(f"  v_max3_f32 v5, v5, v{LG+3}, v{LG+4}")
    e(f"  v_max3_f32 v5, v5, v{LG+5}, v{LG+6}")
    e(f"  v_max_f32 v5, v5, v{LG+7}")
    for w in range(8):
        e(f"  v_sub_f32 v{LG+w}, v{LG+w}, v5")
    for w in range(8):
        e(f"  v_exp_f32 v{LG+w}, v{LG+w}")
    e("  s_nop 0")
    e(f"  v_add_f32 v5, v{LG}, v{LG+1}")
    for w in range(2, 8):
        e(f"  v_add_f32 v5, v5, v{LG+w}")
    e("  v_rcp_f32 v5, v5")
    e("  s_nop 0")
    for w in range(8):
        e(f"  v_mul_f32 v{LG+w}, v{LG+w}, v5")
    for w in range(8):
        e(f"  v_cvt_pk_bf16_f32 v{LG+w}, v{LG+w}, 0")
    for i in range(16):
        e(f"  v_mov_b32 v{OA+i}, 0")
    e("  s_waitcnt lgkmcnt(0)")
    for w in range(8):
        e(f"  v_lshlrev_b32 v6, 16, v{LG+w}")
        for i in range(8):
            e(f"  v_dot2c_f32_bf16 v{OA+2*i}, v{VR+8*w+i}, v{LG+w}")
            e(f"  v_dot2c_f32_bf16 v{OA+2*i+1}, v{VR+8*w+i}, v6")
    e("  s_nop 2")
    for i in range(8):
        e(f"  v_cvt_pk_bf16_f32 v{Q+i}, v{OA+2*i}, v{OA+2*i+1}")
    e("  s_lshl_b32 s48, s29, 2")
    e("  s_add_u32 s48, s48, s25")
    e("  s_lshl_b32 s48, s48, 5")
    e(f"  s_add_u32 s48, s48, {WS_O}")
    e("  v_lshlrev_b32 v3, 10, v3")
    e(f"  buffer_store_dwordx4 {vr(Q)}, v3, s[20:23], s48 offen")
    e(f"  buffer_store_dwordx4 {vr(Q+4)}, v3, s[20:23], s48 offen offset:16")
    stamp(40, SV)
    stamp_flush(20, SV, SV-1, 34)
    e("  s_endpgm")
    e("k1_zc:")
    k1_prefetch(True)
    A2 = 16; A1 = 40; FR = 64
    e("  s_and_b32 s25, s24, 3")
    e("  s_lshr_b32 s26, s24, 2")
    e("  s_mul_i32 s30, s29, 5")
    e("  s_min_u32 s48, s29, 3")
    e("  s_add_u32 s30, s30, s48")
    e("  s_cmp_lt_u32 s29, 3")
    e("  s_cselect_b32 s50, 6, 5")
    e("  s_mul_i32 s49, s26, 3")
    e("  s_add_u32 s49, s49, 2")
    e("  s_cmp_lt_u32 s49, s50")
    e("  s_cselect_b32 s57, 1, 0")
    e("  v_and_b32 v15, 7, v13")
    e("  v_xor_b32 v15, v15, v14")
    e("  v_lshlrev_b32 v15, 4, v15")
    e("  v_lshl_add_u32 v15, v13, 7, v15")
    e("  s_lshl_b32 s48, s25, 12")
    e("  v_add_u32 v104, s48, v15")
    e("  v_xor_b32 v105, 64, v104")
    e("  v_bfe_u32 v15, v1, 2, 2")
    e("  v_lshl_add_u32 v15, v14, 3, v15")
    e("  v_mul_u32_u24 v15, 192, v15")
    e("  v_and_b32 v6, 1, v1")
    e("  v_lshl_add_u32 v15, v6, 3, v15")
    e("  v_bfe_u32 v6, v1, 1, 1")
    e("  v_and_b32 v7, 1, v14")
    e("  v_lshlrev_b32 v7, 1, v7")
    e("  s_mul_i32 s48, s26, 6")
    for fb in range(3):
        e(f"  s_add_u32 s49, s48, {2*fb}")
        e(f"  v_add_u32 v8, s49, v6")
        e(f"  v_xor_b32 v8, v8, v7")
        e(f"  v_lshl_add_u32 v8, v8, 4, v15")
        e(f"  v_add_u32 v{106+fb}, 16384, v8")
    for sl in range(1, K1Z_NS):
        for r in range(5):
            e(f"  v_add_u32 v{104+5*sl+r}, {sl*K1Z_STAGE}, v{104+r}")
    for r in range(A2, A2 + 48):
        e(f"  v_mov_b32 v{r}, 0")
    for r in (124, 125): e(f"  v_mov_b32 v{r}, {fx(-GC1)}")
    for r in (126, 127): e(f"  v_mov_b32 v{r}, {fx(-GC0)}")
    for r in (128, 129): e(f"  v_mov_b32 v{r}, 1.0")
    e("  s_lshl_b32 s48, s28, 7")
    e("  s_lshl_b32 s49, s25, 5")
    e("  s_add_u32 s48, s48, s49")
    e("  v_add_u32 v2, s48, v13")
    e("  s_movk_i32 s48, 2752")
    e("  v_mul_lo_u32 v2, v2, s48")
    e("  v_lshl_add_u32 v2, v14, 3, v2")
    e("  s_mul_i32 s49, s26, 3")
    e("  s_add_u32 s49, s49, s30")
    e("  s_lshl_b32 s58, s49, 5")
    e(f"  s_add_u32 s58, s58, {WS_Z}")
    e("  s_lshl_b32 s48, s28, 7")
    e("  s_lshl_b32 s49, s25, 5")
    e("  s_add_u32 s48, s48, s49")
    e("  v_add_u32 v3, s48, v13")
    e("  v_mul_u32_u24 v3, 192, v3")
    e("  v_lshl_add_u32 v3, v14, 3, v3")
    e("  s_mul_i32 s56, s29, 393216")
    e("  s_mul_i32 s49, s26, 96")
    e("  s_add_u32 s56, s56, s49")
    e(f"  s_add_u32 s56, s56, {WS_Z2}")
    def zreads(k, u):
        sl = k % K1Z_NS; st = (k * 2 + u) % 2; b = FR + st * 20
        for fb in range(3):
            for q in range(2):
                e(f"  ds_read_b64_tr_b16 {vr(b+4*fb+2*q,2)}, v{106+5*sl+fb} offset:{u*32*192 + q*768}")
        for tb in range(2):
            e(f"  ds_read_b128 {vr(b+12+4*tb)}, v{104+5*sl+u} offset:{tb*2048}")
    def zmfma(k, u):
        st = (k * 2 + u) % 2; b = FR + st * 20
        AC = A2 if k < 8 else A1
        for fb in range(3):
            for tb in range(2):
                a = AC + (fb * 2 + tb) * 4
                e(f"  v_mfma_f32_16x16x32_bf16 {vr(a)}, {vr(b+4*fb)}, {vr(b+12+4*tb)}, {vr(a)}")
    def cond_fb2(fn):
        l = L("k1z")
        e("  s_cmp_eq_u32 s57, 0")
        e(f"  s_cbranch_scc1 {l}")
        fn()
        e(f"{l}:")
    TMP = 130
    def gelu_fb(AC, fb):
        regs = []
        for tb in range(2):
            a = AC + (fb * 2 + tb) * 4
            regs += [a, a + 2]
        gelu_pk(regs, TMP, 124, 128)
    def store_fb(AC, fb, colofs, norm):
        for tb in range(2):
            a = AC + (fb * 2 + tb) * 4
            if norm:
                for r in range(4):
                    e(f"  v_fma_f32 v{a+r}, v{a+r}, v{140+2*tb}, -v{141+2*tb}")
            e(f"  v_cvt_pk_bf16_f32 v{a}, v{a}, v{a+1}")
            e(f"  v_cvt_pk_bf16_f32 v{a+1}, v{a+2}, v{a+3}")
            if norm:
                e(f"  s_add_u32 s48, s56, {tb*16*192}")
                e(f"  buffer_store_dwordx2 {vr(a,2)}, v3, s[20:23], s48 offen offset:{fb*32}")
            else:
                e(f"  s_add_u32 s48, s58, {colofs + tb*16*2752}")
                e(f"  buffer_store_dwordx2 {vr(a,2)}, v2, s[20:23], s48 offen offset:{fb*32}")
    def stat_fb(fb):
        for tb in range(2):
            a = A2 + (fb * 2 + tb) * 4
            for r in range(4):
                e(f"  v_add_f32 v{140+2*tb}, v{140+2*tb}, v{a+r}")
                e(f"  v_fmac_f32 v{141+2*tb}, v{a+r}, v{a+r}")
    srd(64, 60, 256)
    e("  s_memrealtime s[90:91]")
    e("  s_waitcnt lgkmcnt(0)")
    e("  s_or_b32 s54, s90, 1")
    e("  v_mov_b32 v138, s54")
    e("  v_mov_b32 v139, 0")
    e("  v_mov_b32 v161, 0")
    e("  s_lshl_b32 s59, s28, 2")
    lwn = L("k1n")
    e("  s_cmp_ge_u32 s24, 1")
    e(f"  s_cbranch_scc1 {lwn}")
    e("  s_mov_b64 exec, 1")
    e("  buffer_atomic_cmpswap v[138:139], v161, s[64:67], s59 offen offset:64 sc0 sc1")
    e("  s_mov_b64 exec, -1")
    e(f"{lwn}:")
    if "notouch" not in EXP:
        e("  s_cmp_ge_u32 s24, 4")
        e("  s_cbranch_scc1 k1_tw%d" % 1)
        e("  s_lshl_b32 s48, s27, 1")
        e("  s_and_b32 s49, s47, 1")
        e("  s_add_u32 s48, s48, s49")
        e("  s_lshl_b32 s48, s48, 5")
        e("  s_lshl_b32 s49, s24, 3")
        e("  s_add_u32 s48, s48, s49")
        e("  s_lshl_b32 s49, s28, 7")
        e("  s_add_u32 s48, s48, s49")
        e("  s_lshl_b32 s48, s48, 10")
        e("  v_lshrrev_b32 v161, 3, v1")
        e("  v_and_b32 v162, 7, v1")
        e("  v_lshlrev_b32 v162, 7, v162")
        e("  v_lshl_add_u32 v161, v161, 10, v162")
        e("  buffer_load_dword v160, v161, s[12:15], s48 offen")
        e("  s_branch k1_td%d" % 1)
        e("k1_tw%d:" % 1)
        e("  s_and_b32 s48, s28, 7")
        e("  s_lshl_b32 s48, s48, 6")
        e("  v_add_u32 v161, s48, v1")
        srd(16, 8, 512 * 2752)
        e("  s_movk_i32 s49, 2752")
        e("  v_mul_lo_u32 v161, v161, s49")
        e("  s_lshl_b32 s48, s30, 5")
        e("  s_and_b32 s49, s24, 1")
        e("  s_lshl_b32 s49, s49, 7")
        e("  s_add_u32 s48, s48, s49")
        e("  s_cmp_lt_u32 s24, 6")
        e("  s_cselect_b32 s49, 1376, 0")
        e("  s_add_u32 s48, s48, s49")
        e("  buffer_load_dword v160, v161, s[16:19], s48 offen")
        e("  buffer_load_dword v160, v161, s[16:19], s48 offen offset:60")
        e("k1_td1:")
    e("  s_barrier")
    stamp(1, SV)
    zreads(0, 0)
    for k in range(16):
        zreads(k, 1)
        e("  s_waitcnt lgkmcnt(8)")
        zmfma(k, 0)
        e("  s_waitcnt lgkmcnt(0)")
        if k < 15:
            if k < 12: stamp(2 + 2*k, SV)
            e("  s_barrier")
            if k < 12: stamp(3 + 2*k, SV)
            zreads(k + 1, 0)
        zmfma(k, 1)
        if k == 7:
            e("  s_nop 7")
            e("  s_nop 7")
            stamp(30, SV)
            for r in range(140, 144): e(f"  v_mov_b32 v{r}, 0")
            for fb in range(2):
                gelu_fb(A2, fb); stat_fb(fb)
            cond_fb2(lambda: (gelu_fb(A2, 2), stat_fb(2)))
            e("  s_lshl_b32 s48, s26, 12")
            e("  s_lshl_b32 s49, s25, 8")
            e("  s_add_u32 s48, s48, s49")
            e(f"  s_add_u32 s48, s48, {K1Z_ST}")
            e("  v_lshlrev_b32 v4, 10, v14")
            e("  v_lshl_add_u32 v4, v13, 3, v4")
            e("  v_add_u32 v4, s48, v4")
            for tb in range(2):
                e(f"  ds_write_b64 v4, {vr(140+2*tb,2)} offset:{tb*128}")
            lwn = L("k1n")
            e("  s_cmp_ge_u32 s24, 1")
            e(f"  s_cbranch_scc1 {lwn}")
            e("  s_waitcnt vmcnt(0)")
            e("  v_readfirstlane_b32 s53, v138")
            e("  s_cmp_eq_u32 s53, 0")
            e("  s_cselect_b32 s54, s54, s53")
            e("  v_mov_b32 v5, s54")
            e(f"  v_mov_b32 v6, {K1Z_ST + 9216}")
            e("  ds_write_b32 v6, v5")
            e(f"{lwn}:")
            e("  s_waitcnt lgkmcnt(0)")
            e("  s_barrier")
            lw = L("k1p")
            e("  s_cmp_ge_u32 s24, 2")
            e(f"  s_cbranch_scc1 {lw}")
            e("  v_lshlrev_b32 v4, 3, v0")
            e(f"  v_add_u32 v4, {K1Z_ST}, v4")
            for t in range(8):
                e(f"  ds_read_b64 {vr(144+2*t,2)}, v4 offset:{t*1024}")
            e("  s_waitcnt lgkmcnt(0)")
            for t in range(1, 8):
                e(f"  v_add_f32 v144, v144, v{144+2*t}")
                e(f"  v_add_f32 v145, v145, v{145+2*t}")
            e(f"  v_mov_b32 v6, {K1Z_ST + 9216}")
            e("  ds_read_b32 v147, v6")
            e("  v_mov_b32 v146, v145")
            e("  s_waitcnt lgkmcnt(0)")
            e("  v_mov_b32 v145, v147")
            e("  s_lshl_b32 s48, s28, 7")
            e("  v_add_u32 v4, s48, v0")
            e("  v_lshlrev_b32 v4, 4, v4")
            e("  s_lshl_b32 s48, s29, 15")
            e(f"  s_add_u32 s48, s48, {WS_ST}")
            e("  buffer_store_dwordx4 v[144:147], v4, s[20:23], s48 offen sc0 sc1")
            e(f"{lw}:")
            stamp(31, SV)
    e("  s_nop 7")
    e("  s_nop 7")
    stamp(32, SV)
    e("  s_lshl_b32 s48, s25, 5")
    e("  v_add_u32 v4, s48, v13")
    e("  v_mul_u32_u24 v4, 192, v4")
    e("  v_lshl_add_u32 v4, v14, 3, v4")
    e("  s_mul_i32 s48, s26, 96")
    e("  v_add_u32 v4, s48, v4")
    def lds_fb(AC, fb, base, norm):
        for tb in range(2):
            a = AC + (fb * 2 + tb) * 4
            if norm:
                for r in range(4):
                    e(f"  v_fma_f32 v{a+r}, v{a+r}, v{140+2*tb}, -v{141+2*tb}")
            e(f"  v_cvt_pk_bf16_f32 v{a}, v{a}, v{a+1}")
            e(f"  v_cvt_pk_bf16_f32 v{a+1}, v{a+2}, v{a+3}")
            e(f"  ds_write_b64 v4, {vr(a,2)} offset:{base + tb*16*192 + fb*32}")
    for fb in range(2):
        gelu_fb(A1, fb); lds_fb(A1, fb, 0, False)
    cond_fb2(lambda: (gelu_fb(A1, 2), lds_fb(A1, 2, 0, False)))
    e("  s_waitcnt lgkmcnt(0)")
    stamp(33, SV)
    e("  s_barrier")
    stamp(34, SV)
    e("  s_lshl_b32 s48, s25, 8")
    e(f"  s_add_u32 s48, s48, {K1Z_ST + 8192}")
    e("  v_lshlrev_b32 v5, 3, v13")
    e("  v_add_u32 v5, s48, v5")
    for tb in range(2):
        e(f"  ds_read_b64 {vr(140+2*tb,2)}, v5 offset:{tb*128}")
    e("  s_mul_i32 s48, s24, 3072")
    e("  v_lshlrev_b32 v6, 4, v1")
    e("  v_add_u32 v6, s48, v6")
    e("  s_mul_i32 s56, s29, 393216")
    e("  s_mul_i32 s49, s28, 24576")
    e("  s_add_u32 s56, s56, s49")
    e("  s_waitcnt lgkmcnt(0)")
    for fb in range(2):
        lds_fb(A2, fb, K1Z_STAGE, True)
    cond_fb2(lambda: lds_fb(A2, 2, K1Z_STAGE, True))
    e("  s_waitcnt lgkmcnt(0)")
    e("  s_barrier")
    for j in range(3):
        e(f"  ds_read_b128 {vr(80+4*j)}, v6 offset:{K1Z_STAGE + j*1024}")
    e("  s_waitcnt lgkmcnt(0)")
    e(f"  s_add_u32 s48, s56, {WS_Z2}")
    for j in range(3):
        e(f"  buffer_store_dwordx4 {vr(80+4*j)}, v6, s[20:23], s48 offen offset:{j*1024}")
    stamp(40, SV)
    stamp_flush(20, SV, SV-1, 34)
    e("  s_endpgm")
    e("k1_load:")
    e("  s_sub_u32 s25, s24, 8")
    e("  v_lshrrev_b32 v4, 3, v1")
    e("  v_and_b32 v5, 7, v1")
    e("  v_xor_b32 v5, v5, v4")
    e("  v_lshlrev_b32 v5, 4, v5")
    e("  v_lshl_add_u32 v2, v4, 10, v5")
    e("  s_lshl_b32 s35, s25, 10")
    e("  s_cmp_eq_u32 s27, 0")
    e("  s_cbranch_scc0 k1_lz")
    srd(16, 6, 512 * 3072)
    e("  s_and_b32 s48, s25, 1")
    e("  s_lshl_b32 s48, s48, 2")
    e("  v_lshrrev_b32 v5, 4, v1")
    e("  v_and_b32 v5, 1, v5")
    e("  v_lshlrev_b32 v5, 1, v5")
    e("  v_or_b32 v5, s48, v5")
    e("  v_and_b32 v6, 7, v1")
    e("  v_xor_b32 v5, v5, v6")
    e("  v_lshlrev_b32 v5, 4, v5")
    e("  v_mul_u32_u24 v3, 3072, v4")
    e("  v_add_u32 v3, v3, v5")
    e(f"  s_mul_i32 s36, s25, {8*3072}")
    e("  s_lshl_b32 s48, s29, 7")
    e("  s_add_u32 s36, s36, s48")
    e("  s_lshl_b32 s48, s28, 17")
    e("  s_lshl_b32 s49, s25, 13")
    e("  s_add_u32 s32, s48, s49")
    e("  s_sub_u32 s32, s32, 16384")
    e("  s_cmp_lt_i32 s32, 0")
    e("  s_cselect_b32 s33, 0, s32")
    e("  s_cmp_lt_u32 s25, 2")
    e("  s_cselect_b32 s43, 1, 0")
    q = []
    def qissue(k):
        sb = (k % 3) * K1_STAGE
        for j in range(3):
            for ii in range(2):
                e(f"  s_add_u32 m0, s35, {sb + 18432 + j*8192 + ii*4096}")
                e(f"  s_add_u32 s42, s36, {k*64*3072 + j*1024 + ii*32*3072}")
                e("  buffer_load_dwordx4 v3, s[16:19], s42 offen lds"); q.append(k)
        for m in range(4):
            e(f"  s_add_u32 m0, s35, {sb + m*4096}")
            e(f"  s_add_u32 s42, s{33 if m == 0 else 32}, {k*128 + m*32*1024}")
            e("  buffer_load_dwordx4 v2, s[12:15], s42 offen lds"); q.append(k)
        l = L("k1h")
        e("  s_cmp_eq_u32 s43, 0")
        e(f"  s_cbranch_scc1 {l}")
        e(f"  s_add_u32 m0, s35, {sb + 16384}")
        e(f"  s_add_u32 s42, s32, {k*128 + 128*1024}")
        e("  buffer_load_dwordx4 v2, s[12:15], s42 offen lds")
        e(f"{l}:")
    def wait_for(k):
        idx = max(i for i, o in enumerate(q) if o == k)
        e(f"  s_waitcnt vmcnt({min(63, len(q) - 1 - idx)})")
    def gate_load(qq):
        srd(52, 10, 1024)
        e("  s_lshl_b32 s74, s2, 3")
        e("  s_lshl_b32 s49, s25, 1")
        e("  s_add_u32 s74, s74, s49")
        e("  s_lshl_b32 s49, s74, 10")
        e("  v_lshlrev_b32 v8, 4, v1")
        e("  buffer_load_dwordx4 v[140:143], v8, s[12:15], s49 offen")
        e("  buffer_load_dwordx4 v[148:151], v8, s[12:15], s49 offen offset:1024")
        e("  buffer_load_dwordx4 v[144:147], v8, s[52:55], 0 offen")
        qq += ["g", "g", "g"]
    def gate(qq):
        for rr in range(2):
            e(f"  v_mov_b32 v{152+rr}, 0")
            for i in range(4):
                e(f"  v_dot2c_f32_bf16 v{152+rr}, v{140+8*rr+i}, v{144+i}")
        e("  s_nop 3")
        for sh in (8, 4, 2, 1):
            for rr in range(2):
                e(f"  v_add_f32_dpp v{152+rr}, v{152+rr}, v{152+rr} row_ror:{sh} row_mask:0xf bank_mask:0xf")
            e("  s_nop 1")
        for rr in range(2):
            e(f"  v_readlane_b32 s70, v{152+rr}, 0")
            e(f"  v_readlane_b32 s71, v{152+rr}, 16")
            e(f"  v_readlane_b32 s72, v{152+rr}, 32")
            e(f"  v_readlane_b32 s73, v{152+rr}, 48")
            e("  s_nop 1")
            e(f"  v_mov_b32 v{154+rr}, s70")
            e(f"  v_add_f32 v{154+rr}, s71, v{154+rr}")
            e(f"  v_add_f32 v{154+rr}, s72, v{154+rr}")
            e(f"  v_add_f32 v{154+rr}, s73, v{154+rr}")
            e(f"  v_mul_f32 v{154+rr}, {fx(-LOG2E)}, v{154+rr}")
            e(f"  v_exp_f32 v{154+rr}, v{154+rr}")
            e("  s_nop 0")
            e(f"  v_add_f32 v{154+rr}, 1.0, v{154+rr}")
            e(f"  v_rcp_f32 v{154+rr}, v{154+rr}")
        e("  s_lshl_b32 s48, s74, 2")
        e(f"  s_add_u32 s48, s48, {WS_G}")
        e("  v_mov_b32 v9, 0")
        e("  s_mov_b64 exec, 1")
        e("  buffer_store_dwordx2 v[154:155], v9, s[20:23], s48 offen")
        e("  s_mov_b64 exec, -1")
        qq.append("g")
    stamp(1, SV)
    for k in range(2):
        qissue(k); stamp(2 + k, SV)
    stamp(5, SV)
    for k in range(8):
        wait_for(k)
        stamp(6 + 3*k, SV)
        e("  s_barrier")
        stamp(7 + 3*k, SV)
        if k + 2 < 8: qissue(k + 2)
        if k == 0: gate_load(q)
        if k == 4: gate(q)
        stamp(8 + 3*k, SV)
    stamp_flush(20, SV, SV-1, 34)
    e("  s_endpgm")
    e("k1_lz:")
    srd(16, 8, 512 * 2752)
    for p in range(3):
        e(f"  v_add_u32 v6, {64*p}, v1")
        e("  v_mul_u32_u24 v3, 0x5556, v6")
        e("  v_lshrrev_b32 v3, 18, v3")
        e("  v_mul_u32_u24 v4, 12, v3")
        e("  v_sub_u32 v4, v6, v4")
        e("  v_bfe_u32 v5, v3, 3, 1")
        e("  v_lshlrev_b32 v5, 1, v5")
        e("  v_xor_b32 v4, v4, v5")
        e("  s_movk_i32 s48, 2752")
        e("  v_mul_lo_u32 v3, v3, s48")
        e(f"  v_lshl_add_u32 v{20+p}, v4, 4, v3")
    e("  s_mul_i32 s30, s29, 5")
    e("  s_min_u32 s48, s29, 3")
    e("  s_add_u32 s30, s30, s48")
    e("  s_lshl_b32 s48, s30, 5")
    e(f"  s_mul_i32 s49, s25, {16*2752}")
    e("  s_add_u32 s36, s48, s49")
    e("  s_mul_i32 s37, s25, 3072")
    e("  s_add_u32 s37, s37, 16384")
    e("  s_lshl_b32 s48, s28, 17")
    e("  s_lshl_b32 s49, s25, 13")
    e("  s_add_u32 s32, s48, s49")
    q2 = []
    def zissue(s_):
        sb = (s_ % K1Z_NS) * K1Z_STAGE
        k = s_ & 7
        co = 1376 if s_ < 8 else 0
        for p in range(3):
            e(f"  s_add_u32 m0, s37, {sb + p*1024}")
            e(f"  s_add_u32 s42, s36, {k*64*2752 + co}")
            e(f"  buffer_load_dwordx4 v{20+p}, s[16:19], s42 offen lds"); q2.append(s_)
        for m in range(4):
            e(f"  s_add_u32 m0, s35, {sb + m*4096}")
            e(f"  s_add_u32 s42, s32, {k*128 + m*32*1024}")
            e("  buffer_load_dwordx4 v2, s[12:15], s42 offen lds"); q2.append(s_)
    def wait2(k):
        idx = max(i for i, o in enumerate(q2) if o == k)
        e(f"  s_waitcnt vmcnt({min(63, len(q2) - 1 - idx)})")
    srd(64, 60, 256)
    e("  v_subrev_u32 v24, 512, v0")
    e("  s_lshl_b32 s48, s28, 7")
    e("  v_add_u32 v25, s48, v24")
    e("  v_lshlrev_b32 v25, 4, v25")
    e("  s_memrealtime s[90:91]")
    e("  s_waitcnt lgkmcnt(0)")
    e("  s_or_b32 s54, s90, 1")
    e("  v_mov_b32 v158, s54")
    e("  v_mov_b32 v159, 0")
    e("  v_mov_b32 v157, 0")
    def gran_loads():
        for pl in range(8):
            e(f"  s_mov_b32 s48, {WS_ST + pl*32768}")
            e(f"  buffer_load_dwordx4 {vr(64+4*pl)}, v25, s[20:23], s48 offen sc0 sc1")
    for k in range(2): zissue(k)
    for k in range(16):
        if k == 15:
            lw = L("k1p"); lw2 = L("k1p")
            e("  s_cmp_ge_u32 s25, 2")
            e(f"  s_cbranch_scc1 {lw}")
            e("  s_waitcnt vmcnt(8)")
            e(f"  s_branch {lw2}")
            e(f"{lw}:")
            wait2(k)
            e(f"{lw2}:")
        else:
            wait2(k)
        e("  s_barrier")
        if k == 0:
            zissue(2); zissue(3); gate_load(q2)
        if k >= 1 and k - 1 + K1Z_NS < 16: zissue(k - 1 + K1Z_NS)
        if k == 5: gate(q2)
        if k == 8:
            e("  s_barrier")
            e(f"  v_mov_b32 v6, {K1Z_ST + 9216}")
            e("  ds_read_b32 v158, v6")
            e("  s_waitcnt lgkmcnt(0)")
        if k == PK:
            lw = L("k1p")
            e("  s_cmp_ge_u32 s25, 2")
            e(f"  s_cbranch_scc1 {lw}")
            gran_loads()
            e(f"{lw}:")
    lw = L("k1p")
    e("  s_cmp_ge_u32 s25, 2")
    e(f"  s_cbranch_scc1 {lw}")
    e("  v_readfirstlane_b32 s54, v158")
    e("  s_mov_b32 s52, 0")
    stamp(3, SV)
    e("k1_poll:")
    e("  s_waitcnt vmcnt(0)")
    e("  v_xor_b32 v5, s54, v65")
    for pl in range(8):
        for hh in (1, 3):
            if pl == 0 and hh == 1: continue
            e(f"  v_xor_b32 v6, s54, v{64+4*pl+hh}")
            e("  v_or_b32 v5, v5, v6")
    e("  v_cmp_ne_u32 vcc, 0, v5")
    e("  s_add_u32 s52, s52, 1")
    e("  s_cbranch_vccz k1_got")
    e("  s_cmp_lt_u32 s52, 0x40000")
    e("  s_cbranch_scc0 k1_got")
    e("  s_sleep 2")
    gran_loads()
    e("  s_branch k1_poll")
    e("k1_got:")
    stamp(5, SV)
    if STAMP: e(f"  v_writelane_b32 v{SV}, s52, 58")
    for t in range(1, 8):
        e(f"  v_add_f32 v64, v64, v{64+4*t}")
        e(f"  v_add_f32 v66, v66, v{66+4*t}")
    e(f"  v_mul_f32 v144, {fx(1.0/688)}, v64")
    e(f"  v_mul_f32 v145, {fx(1.0/688)}, v66")
    e("  v_fma_f32 v145, -v144, v144, v145")
    e("  v_max_f32 v145, 0, v145")
    e(f"  v_add_f32 v145, {fx(1e-5)}, v145")
    e("  v_rsq_f32 v146, v145")
    e("  s_nop 0")
    e("  v_mul_f32 v147, v144, v146")
    e("  v_lshlrev_b32 v4, 3, v24")
    e(f"  v_add_u32 v4, {K1Z_ST + 8192}, v4")
    e(f"  ds_write_b64 v4, v[146:147]")
    e("  s_waitcnt lgkmcnt(0)")
    e(f"{lw}:")
    stamp(7, SV)
    stamp_flush(20, SV, SV-1, 34)
    e("  s_barrier")
    e("  s_mul_i32 s48, s25, 6144")
    e("  v_lshlrev_b32 v6, 4, v1")
    e("  v_add_u32 v6, s48, v6")
    for j in range(6):
        e(f"  ds_read_b128 {vr(64+4*j)}, v6 offset:{j*1024}")
    e("  s_mul_i32 s56, s29, 393216")
    e("  s_mul_i32 s49, s28, 24576")
    e("  s_add_u32 s56, s56, s49")
    e(f"  s_add_u32 s56, s56, {WS_Z1}")
    for j in range(6):
        e(f"  s_waitcnt lgkmcnt({5-j})")
        if j < 4:
            e(f"  buffer_store_dwordx4 {vr(64+4*j)}, v6, s[20:23], s56 offen offset:{j*1024}")
        else:
            e(f"  s_add_u32 s48, s56, 4096")
            e(f"  buffer_store_dwordx4 {vr(64+4*j)}, v6, s[20:23], s48 offen offset:{(j-4)*1024}")
    e("k1_end:")
    e("  s_endpgm")
    return kd(name, 168)

K2_NS = 8
K2_ZOFF = K2_NS * 8192
K2_LDS = K2_ZOFF + K2_NS * 12288
K2_NIT = 32
def sched(n, ns, issue, wait, bar, extra=None, burst=2, lag=1):
    nxt = 0
    for k in range(min(2, n)):
        issue(k); nxt = k + 1
    for k in range(n):
        wait(k)
        bar(k)
        lim = min(n, k - 1 + ns + (1 if k == 0 else 0))
        lim = min(n, max(k - 1, -1) + ns + 1) if k == 0 else min(n, k - 1 + ns + 0)
        c = 0
        while nxt < n and nxt <= max(k - lag, -1) + ns and c < burst:
            issue(nxt); nxt += 1; c += 1
        if extra: extra(k)

def gen_k2():
    name = "k2_kernel"
    kernel_begin(name)
    e("  s_cmp_ge_u32 s2, 256")
    e("  s_cbranch_scc1 k2_end")
    if STAMP: e("  v_mov_b32 v126, 0")
    stamp(0, 126)
    rstamp(59, 126)
    e("  s_load_dwordx4 s[4:7], s[0:1], 40")
    e("  s_load_dwordx2 s[8:9], s[0:1], 88")
    e("  v_and_b32 v1, 63, v0")
    e("  v_lshrrev_b32 v2, 6, v0")
    e("  s_nop 0")
    e("  v_readfirstlane_b32 s24, v2")
    e("  s_and_b32 s46, s2, 7")
    e("  s_lshr_b32 s47, s2, 3")
    e("  s_lshr_b32 s28, s46, 1")
    e("  s_lshl_b32 s28, s28, 3")
    e("  s_lshr_b32 s48, s47, 2")
    e("  s_add_u32 s28, s28, s48")
    e("  s_and_b32 s29, s46, 1")
    e("  s_lshl_b32 s29, s29, 2")
    e("  s_and_b32 s48, s47, 3")
    e("  s_add_u32 s29, s29, s48")
    e("  s_mul_i32 s30, s29, 5")
    e("  s_min_u32 s48, s29, 3")
    e("  s_add_u32 s30, s30, s48")
    e("  s_waitcnt lgkmcnt(0)")
    srd(12, 4, 2048 * 4096)
    srd(16, 6, 4096)
    srd(20, 8, WS_SIZE)
    e("  s_cmp_ge_u32 s24, 4")
    e("  s_cbranch_scc1 k2_prod")
    e("  s_and_b32 s25, s24, 1")
    e("  s_lshr_b32 s26, s24, 1")
    e("  v_and_b32 v13, 15, v1")
    e("  v_lshrrev_b32 v14, 4, v1")
    ACC = 16
    FR = 40
    e("  v_and_b32 v15, 7, v13")
    e("  v_xor_b32 v15, v15, v14")
    e("  v_lshlrev_b32 v15, 4, v15")
    e("  v_lshl_add_u32 v15, v13, 7, v15")
    e("  s_lshl_b32 s48, s26, 12")
    e("  v_add_u32 v122, s48, v15")
    e("  v_xor_b32 v123, 64, v122")
    e("  v_bfe_u32 v15, v1, 2, 2")
    e("  v_lshl_add_u32 v15, v14, 3, v15")
    e("  v_mul_u32_u24 v15, 192, v15")
    e("  v_and_b32 v6, 1, v1")
    e("  v_lshl_add_u32 v15, v6, 3, v15")
    e("  v_bfe_u32 v6, v1, 1, 1")
    e("  v_and_b32 v7, 1, v14")
    e("  v_lshlrev_b32 v7, 1, v7")
    e("  s_mul_i32 s48, s25, 6")
    for fb in range(3):
        e(f"  s_add_u32 s49, s48, {2*fb}")
        e(f"  v_add_u32 v8, s49, v6")
        e(f"  v_xor_b32 v8, v8, v7")
        e(f"  v_lshl_add_u32 v8, v8, 4, v15")
        e(f"  v_add_u32 v{2+fb}, {K2_ZOFF}, v8")
        e(f"  v_add_u32 v{9+fb}, {K2_ZOFF + 4*12288}, v8")
    for r in range(ACC, ACC + 24):
        e(f"  v_mov_b32 v{r}, 0")
    e("  s_lshl_b32 s48, s28, 6")
    e("  s_lshl_b32 s49, s26, 5")
    e("  s_add_u32 s48, s48, s49")
    e("  v_add_u32 v104, s48, v13")
    e("  v_lshlrev_b32 v105, 1, v104")
    e("  v_mul_u32_u24 v106, 192, v104")
    e("  v_lshl_add_u32 v106, v14, 3, v106")
    e("  s_mul_i32 s49, s25, 3")
    e("  s_add_u32 s49, s49, s30")
    e("  s_lshl_b32 s31, s49, 5")
    e("  s_mul_i32 s51, s29, 393216")
    e("  s_mul_i32 s49, s25, 96")
    e("  s_add_u32 s51, s51, s49")
    e(f"  s_add_u32 s51, s51, {WS_Z1}")
    def epi_prefetch():
        e("  buffer_load_ushort v120, v105, s[16:19], 0 offen")
        e("  buffer_load_ushort v121, v105, s[16:19], 0 offen offset:32")
        for tb in range(2):
            for fb in range(3):
                e(f"  s_add_u32 s49, s51, {tb*16*192}")
                e(f"  buffer_load_dwordx2 {vr(108+2*(tb*3+fb),2)}, v106, s[20:23], s49 offen offset:{fb*32}")
    def rd_list(k, u):
        sl = k % K2_NS; st = (k * 2 + u) % 3; b = FR + st * 20
        zb = 2 if sl < 4 else 9
        o = []
        for fb in range(3):
            for q in range(2):
                o.append(f"  ds_read_b64_tr_b16 {vr(b+4*fb+2*q,2)}, v{zb+fb} offset:{(sl%4)*12288 + u*32*192 + q*768}")
        for tb in range(2):
            o.append(f"  ds_read_b128 {vr(b+12+4*tb)}, v{122+u} offset:{sl*8192 + tb*2048}")
        return o
    def mf_list(k, u):
        st = (k * 2 + u) % 3; b = FR + st * 20
        o = []
        for fb in range(3):
            for tb in range(2):
                a = ACC + (fb * 2 + tb) * 4
                o.append(f"  v_mfma_f32_16x16x32_bf16 {vr(a)}, {vr(b+4*fb)}, {vr(b+12+4*tb)}, {vr(a)}")
        return o
    def interleave(ms, rs):
        ri = 0
        for i, m in enumerate(ms):
            e(m)
            take = (len(rs) - ri + (len(ms) - i) - 1) // (len(ms) - i)
            for _ in range(take):
                e(rs[ri]); ri += 1
    e("  s_barrier")
    stamp(1, 126)
    for r in rd_list(0, 0) + rd_list(0, 1): e(r)
    for k in range(K2_NIT):
        if k == 8: epi_prefetch()
        if k + 1 < K2_NIT:
            if k < 24: stamp(2 + 2*k, 126)
            e("  s_barrier")
            if k < 24: stamp(3 + 2*k, 126)
        for u in range(2):
            nx = rd_list(k + 1, u) if k + 1 < K2_NIT else []
            e(f"  s_waitcnt lgkmcnt({8 if (k + 1 < K2_NIT or u == 0) else 0})")
            interleave(mf_list(k, u), nx)
    e("  s_waitcnt vmcnt(0)")
    e("  s_nop 7")
    e("  v_lshlrev_b32 v120, 16, v120")
    e("  v_lshlrev_b32 v121, 16, v121")
    e("  s_movk_i32 s48, 1408")
    e("  v_mul_lo_u32 v105, v104, s48")
    e("  v_lshl_add_u32 v105, v14, 3, v105")
    e(f"  s_add_u32 s31, s31, {WS_U}")
    e("  s_cmp_lt_u32 s29, 3")
    e("  s_cselect_b32 s50, 6, 5")
    for fb in range(3):
        lskip = L("k2e")
        if fb == 2:
            e("  s_mul_i32 s49, s25, 3")
            e("  s_add_u32 s49, s49, 2")
            e("  s_cmp_lt_u32 s49, s50")
            lval = L("k2v")
            e(f"  s_cbranch_scc1 {lval}")
            e("  s_cmp_eq_u32 s29, 7")
            e(f"  s_cbranch_scc0 {lskip}")
            for tb in range(2):
                a = ACC + (fb * 2 + tb) * 4
                e(f"  v_mov_b32 v{a}, 0")
                e(f"  v_mov_b32 v{a+1}, 0")
                e(f"  s_add_u32 s49, s31, {tb*16*1408}")
                e(f"  buffer_store_dwordx2 {vr(a,2)}, v105, s[20:23], s49 offen offset:{fb*32}")
            e(f"  s_branch {lskip}")
            e(f"{lval}:")
        for tb in range(2):
            a = ACC + (fb * 2 + tb) * 4
            z = 108 + 2 * (tb * 3 + fb)
            e(f"  v_lshlrev_b32 v60, 16, v{z}")
            e(f"  v_and_b32 v61, 0xffff0000, v{z}")
            e(f"  v_lshlrev_b32 v62, 16, v{z+1}")
            e(f"  v_and_b32 v63, 0xffff0000, v{z+1}")
            for r in range(4):
                e(f"  v_add_f32 v{a+r}, v{a+r}, v{120+tb}")
            for r in range(4):
                e(f"  v_mul_f32 v{a+r}, v{a+r}, v{60+r}")
            e(f"  v_cvt_pk_bf16_f32 v{a}, v{a}, v{a+1}")
            e(f"  v_cvt_pk_bf16_f32 v{a+1}, v{a+2}, v{a+3}")
            e(f"  s_add_u32 s49, s31, {tb*16*1408}")
            e(f"  buffer_store_dwordx2 {vr(a,2)}, v105, s[20:23], s49 offen offset:{fb*32}")
        e(f"{lskip}:")
    stamp(60, 126)
    stamp_flush(20, 126, 124, 33)
    e("  s_endpgm")
    e("k2_prod:")
    e("  s_sub_u32 s25, s24, 4")
    e("  v_lshrrev_b32 v10, 3, v1")
    e("  v_and_b32 v11, 7, v1")
    e("  v_xor_b32 v11, v11, v10")
    e("  v_lshlrev_b32 v11, 4, v11")
    e("  v_lshl_add_u32 v10, v10, 12, v11")
    e("  s_lshl_b32 s48, s28, 18")
    e("  s_lshl_b32 s49, s25, 15")
    e("  s_add_u32 s33, s48, s49")
    e("  s_lshl_b32 s35, s25, 10")
    for p in range(3):
        e(f"  v_add_u32 v2, {64*p}, v1")
        e("  v_mul_u32_u24 v3, 0x5556, v2")
        e("  v_lshrrev_b32 v3, 18, v3")
        e("  v_mul_u32_u24 v4, 12, v3")
        e("  v_sub_u32 v4, v2, v4")
        e("  v_bfe_u32 v5, v3, 3, 1")
        e("  v_lshlrev_b32 v5, 1, v5")
        e("  v_xor_b32 v4, v4, v5")
        e("  v_mul_u32_u24 v3, 192, v3")
        e(f"  v_lshl_add_u32 v{20+p}, v4, 4, v3")
    e("  s_mul_i32 s48, s29, 393216")
    e(f"  s_mul_i32 s49, s25, {16*192}")
    e("  s_add_u32 s32, s48, s49")
    e(f"  s_add_u32 s32, s32, {WS_Z2}")
    e("  s_mul_i32 s36, s25, 3072")
    e(f"  s_add_u32 s36, s36, {K2_ZOFF}")
    q = []
    ROT = int(os.environ.get("ROT", "0"))
    e(f"  s_mul_i32 s37, s28, {ROT}")
    def dma(k):
        sl = k % K2_NS
        e(f"  s_add_u32 s38, s37, {k}")
        e("  s_and_b32 s38, s38, 31")
        e(f"  s_mul_i32 s39, s38, {64*192}")
        e("  s_add_u32 s39, s39, s32")
        e("  s_lshl_b32 s38, s38, 7")
        e("  s_add_u32 s38, s38, s33")
        for m in range(3):
            e(f"  s_add_u32 m0, s36, {sl*12288 + m*1024}")
            e("  s_nop 0")
            e(f"  buffer_load_dwordx4 v{20 + m}, s[20:23], s39 offen lds")
            q.append(k)
        for ii in range(2):
            e(f"  s_add_u32 m0, s35, {sl*8192 + ii*4096}")
            e(f"  s_add_u32 s42, s38, {ii*32*4096}")
            e("  buffer_load_dwordx4 v10, s[12:15], s42 offen lds")
            q.append(k)
    def wait_for(k):
        idx = max(i for i, o in enumerate(q) if o == k)
        e(f"  s_waitcnt vmcnt({min(63, len(q) - 1 - idx)})")
    def bar(k):
        if k < 24: stamp(2 + 2*k, 126)
        e("  s_barrier")
        if k < 24: stamp(3 + 2*k, 126)
    sched(K2_NIT, K2_NS, dma, wait_for, bar, lag=2)
    stamp(62, 126)
    stamp_flush(20, 126, 124, 33)
    e("k2_end:")
    e("  s_endpgm")
    return kd(name, 128)

K3_NS = 8
K3_LDS = K3_NS * 16384
def interleave(ms, rs):
    ri = 0
    for i, m in enumerate(ms):
        e(m)
        take = (len(rs) - ri + (len(ms) - i) - 1) // (len(ms) - i)
        for _ in range(take):
            e(rs[ri]); ri += 1
def gen_k3():
    name = NAME + "_kernel"
    NK = 19
    kernel_begin(name)
    e("  s_cmp_ge_u32 s2, 256")
    e("  s_cbranch_scc1 k3_end")
    if STAMP: e("  v_mov_b32 v127, 0")
    stamp(0)
    rstamp(59, 127)
    e("  s_load_dwordx2 s[4:5], s[0:1], 16")
    e("  s_load_dwordx2 s[6:7], s[0:1], 56")
    e("  s_load_dwordx2 s[8:9], s[0:1], 72")
    e("  s_load_dwordx2 s[10:11], s[0:1], 88")
    e("  v_and_b32 v1, 63, v0")
    e("  v_lshrrev_b32 v2, 6, v0")
    e("  s_nop 0")
    e("  v_readfirstlane_b32 s24, v2")
    e("  s_and_b32 s46, s2, 7")
    e("  s_lshr_b32 s47, s2, 3")
    e("  s_lshr_b32 s28, s46, 1")
    e("  s_lshl_b32 s28, s28, 3")
    e("  s_lshr_b32 s48, s47, 2")
    e("  s_add_u32 s28, s28, s48")
    e("  s_and_b32 s29, s46, 1")
    e("  s_lshl_b32 s29, s29, 2")
    e("  s_and_b32 s48, s47, 3")
    e("  s_add_u32 s29, s29, s48")
    e("  v_and_b32 v13, 15, v1")
    e("  v_lshrrev_b32 v14, 4, v1")
    e("  s_waitcnt lgkmcnt(0)")
    srd(20, 10, WS_SIZE)
    e("  s_cmp_ge_u32 s24, 4")
    e("  s_cbranch_scc1 k3_load")
    srd(52, 8, 2048 * 1024)
    e("  s_and_b32 s25, s24, 1")
    e("  s_lshr_b32 s26, s24, 1")
    ACA = 16; ACB = 32; FR = 48
    e("  v_and_b32 v6, 7, v13")
    e("  v_xor_b32 v6, v6, v14")
    e("  v_lshlrev_b32 v6, 4, v6")
    e("  v_lshl_add_u32 v6, v13, 7, v6")
    e("  s_lshl_b32 s48, s26, 12")
    e("  v_add_u32 v4, s48, v6")
    e("  v_xor_b32 v5, 64, v4")
    e("  v_add_u32 v2, 65536, v4")
    e("  v_add_u32 v3, 65536, v5")
    e("  v_bfe_u32 v6, v1, 2, 2")
    e("  v_and_b32 v7, 1, v14")
    e("  v_lshlrev_b32 v7, 1, v7")
    e("  v_lshrrev_b32 v8, 1, v6")
    e("  v_or_b32 v7, v7, v8")
    e("  v_lshlrev_b32 v7, 1, v7")
    e("  v_bfe_u32 v8, v1, 1, 1")
    e("  v_lshlrev_b32 v9, 10, v14")
    e("  v_lshl_add_u32 v9, v6, 7, v9")
    e("  v_and_b32 v6, 1, v1")
    e("  v_lshl_add_u32 v9, v6, 3, v9")
    e("  s_lshl_b32 s48, s25, 2")
    for nb in range(2):
        e(f"  s_add_u32 s49, s48, {2*nb}")
        e("  v_add_u32 v6, s49, v8")
        e("  v_xor_b32 v6, v6, v7")
        e(f"  v_lshl_add_u32 v{10+nb}, v6, 4, v9")
        e(f"  v_add_u32 v{100+nb}, 65536, v{10+nb}")
    for r in range(16, 48):
        e(f"  v_mov_b32 v{r}, 0")
    e("  s_lshl_b32 s48, s28, 6")
    e("  s_lshl_b32 s49, s26, 5")
    e("  s_add_u32 s48, s48, s49")
    e("  v_add_u32 v104, s48, v13")
    e("  v_lshlrev_b32 v105, 2, v104")
    def rd_list(k, u):
        sl = k % K3_NS; st = (k * 2 + u) % 3; b = FR + st * 16
        so = (sl % 4) * 16384
        wa = 10 if sl < 4 else 100
        ta = 4 if sl < 4 else 2
        o = []
        for nb in range(2):
            for q in range(2):
                o.append(f"  ds_read_b64_tr_b16 {vr(b+4*nb+2*q,2)}, v{wa+nb} offset:{so + 8192 + u*4096 + q*512}")
        for tb in range(2):
            o.append(f"  ds_read_b128 {vr(b+8+4*tb)}, v{ta+u} offset:{so + tb*2048}")
        return o
    def mf_list(k, u):
        st = (k * 2 + u) % 3; b = FR + st * 16
        AC = ACA if k < 8 else ACB
        o = []
        for nb in range(2):
            for tb in range(2):
                a = AC + (nb * 2 + tb) * 4
                o.append(f"  v_mfma_f32_16x16x32_bf16 {vr(a)}, {vr(b+4*nb)}, {vr(b+8+4*tb)}, {vr(a)}")
        return o
    e("  s_barrier")
    stamp(1)
    for r in rd_list(0, 0) + rd_list(0, 1): e(r)
    for k in range(NK):
        if k == 4:
            e(f"  s_mov_b32 s48, {WS_G}")
            e("  buffer_load_dword v120, v105, s[20:23], s48 offen")
            e("  buffer_load_dword v121, v105, s[20:23], s48 offen offset:64")
        if k + 1 < NK:
            stamp(2 + 2*k)
            e("  s_barrier")
            stamp(3 + 2*k)
        for u in range(2):
            nx = rd_list(k + 1, u) if k + 1 < NK else []
            e(f"  s_waitcnt lgkmcnt({6 if (k + 1 < NK or u == 0) else 0})")
            interleave(mf_list(k, u), nx)
    e("  s_waitcnt vmcnt(0)")
    e("  s_nop 7")
    e("  v_sub_f32 v122, 1.0, v120")
    e("  v_sub_f32 v123, 1.0, v121")
    e("  v_lshlrev_b32 v105, 10, v104")
    e("  v_lshl_add_u32 v105, v14, 3, v105")
    e("  s_lshl_b32 s48, s29, 7")
    e("  s_lshl_b32 s49, s25, 6")
    e("  s_add_u32 s48, s48, s49")
    for nb in range(2):
        for tb in range(2):
            a = ACA + (nb * 2 + tb) * 4
            b = ACB + (nb * 2 + tb) * 4
            for r in range(4):
                e(f"  v_mul_f32 v{a+r}, v{a+r}, v{120+tb}")
            for r in range(4):
                e(f"  v_fmac_f32 v{a+r}, v{b+r}, v{122+tb}")
            e(f"  v_cvt_pk_bf16_f32 v{a}, v{a}, v{a+1}")
            e(f"  v_cvt_pk_bf16_f32 v{a+1}, v{a+2}, v{a+3}")
            e(f"  s_add_u32 s49, s48, {tb*16*1024}")
            e(f"  buffer_store_dwordx2 {vr(a,2)}, v105, s[52:55], s49 offen offset:{nb*32}")
    stamp(60)
    stamp_flush(20)
    e("  s_endpgm")
    e("k3_load:")
    srd(12, 4, 512 * 1024)
    srd(16, 6, 688 * 1024)
    e("  s_sub_u32 s25, s24, 4")
    e("  v_lshrrev_b32 v4, 3, v1")
    e("  v_and_b32 v5, 7, v1")
    e("  v_xor_b32 v5, v5, v4")
    e("  v_lshlrev_b32 v5, 4, v5")
    e("  v_lshl_add_u32 v2, v4, 10, v5")
    e("  v_mul_u32_u24 v3, 1408, v4")
    e("  v_add_u32 v3, v3, v5")
    e("  s_and_b32 s48, s25, 1")
    e("  s_lshl_b32 s48, s48, 2")
    e("  v_lshrrev_b32 v5, 4, v1")
    e("  v_and_b32 v5, 1, v5")
    e("  v_lshlrev_b32 v5, 1, v5")
    e("  v_or_b32 v5, s48, v5")
    e("  v_and_b32 v6, 7, v1")
    e("  v_xor_b32 v5, v5, v6")
    e("  v_lshlrev_b32 v5, 4, v5")
    e("  v_lshl_add_u32 v15, v4, 10, v5")
    e("  s_lshl_b32 s48, s28, 6")
    e("  s_lshl_b32 s49, s25, 3")
    e("  s_add_u32 s48, s48, s49")
    e("  s_lshl_b32 s32, s48, 10")
    e(f"  s_add_u32 s32, s32, {WS_O}")
    e("  s_mul_i32 s33, s48, 1408")
    e(f"  s_add_u32 s33, s33, {WS_U}")
    e("  s_lshl_b32 s34, s25, 13")
    e("  s_lshl_b32 s48, s29, 7")
    e("  s_add_u32 s34, s34, s48")
    e("  s_lshl_b32 s35, s25, 10")
    q = []
    def issue(k):
        so = (k % K3_NS) * 16384
        for hf in range(2):
            e(f"  s_add_u32 m0, s35, {so + hf*4096}")
            if k < 8:
                e(f"  s_add_u32 s42, s32, {k*128 + hf*32*1024}")
                e("  buffer_load_dwordx4 v2, s[20:23], s42 offen lds")
            else:
                e(f"  s_add_u32 s42, s33, {(k-8)*128 + hf*32*1408}")
                e("  buffer_load_dwordx4 v3, s[20:23], s42 offen lds")
            q.append(k)
        for hf in range(2):
            e(f"  s_add_u32 m0, s35, {so + 8192 + hf*4096}")
            kk = k if k < 8 else k - 8
            e(f"  s_add_u32 s42, s34, {kk*65536 + hf*32*1024}")
            e(f"  buffer_load_dwordx4 v15, s[{12 if k < 8 else 16}:{15 if k < 8 else 19}], s42 offen lds")
            q.append(k)
    def wait_for(k):
        idx = max(i for i, o in enumerate(q) if o == k)
        e(f"  s_waitcnt vmcnt({min(63, len(q) - 1 - idx)})")
    def bar(k):
        e("  s_barrier")
    sched(NK, K3_NS, issue, wait_for, bar, lag=2)
    e("k3_end:")
    e("  s_endpgm")
    return kd(name, 128)

def header(launches):
    ref = open("cdna_kernels/%s.s.ref" % NAME).read().splitlines()
    for l in ref:
        if l.startswith("; @launch") or not l.startswith(";"): break
        if "Override launch" in l or "grid=ceil" in l: continue
        e(l)
    for l in launches: e(l)
    e('.amdgcn_target "amdgcn-amd-amdhsa--gfx950"')
    e(".text")

if __name__ == "__main__":
    which = sys.argv[1] if len(sys.argv) > 1 else "all"
    launches = [f"; @launch kernel=k1_kernel grid=(256,1,1) block=(768,1,1) lds={K1_LDS}",
                f"; @launch kernel=k2_kernel grid=(256,1,1) block=(512,1,1) lds={K2_LDS}",
                f"; @launch kernel={NAME}_kernel grid=(256,1,1) block=(512,1,1) lds={K3_LDS}"]
    header(launches)
    kds = [gen_k1(), gen_k2(), gen_k3()]
    e('.section .rodata,"a"')
    for k in kds:
        e(".p2align 6")
        e(k)
    dst = sys.argv[2] if len(sys.argv) > 2 else "k.s"
    open(dst, "w").write("\n".join(out) + "\n")
    print("wrote", dst, len(out), "lines")
```

```python
import sys, struct, os
EXP = os.environ.get("EXP", "")
PF0 = int(os.environ.get("PF0", "1"))
PFZ = int(os.environ.get("PFZ", "1"))
PK = int(os.environ.get("PK", "14"))
PA = int(os.environ.get("PA", "10"))
NAME = "gated_mix__sliding_local_dilated__mixer_gmlp__prompt"
out = []
def e(s=""): out.append(s)
_lbl = [0]
def L(p="L"):
    _lbl[0] += 1
    return f"{p}_{_lbl[0]}"
def f2u(x): return struct.unpack("<I", struct.pack("<f", x))[0]
def fx(x): return "0x%08x" % f2u(x)

WS_Z = 0
WS_O = 8 << 20
WS_U = 12 << 20
WS_ST = 16 << 20
WS_G = 17 << 20
WS_Z2 = 20 << 20
WS_Z1 = 24 << 20
WS_SIZE = 268435456
LOG2E = 1.4426950408889634
GC0 = 2 * 0.7978845608028654 * LOG2E
GC1 = GC0 * 0.044715

def srd(s, base, size):
    e(f"  s_mov_b32 s{s}, s{base}")
    e(f"  s_and_b32 s{s+1}, s{base+1}, 0xffff")
    e(f"  s_mov_b32 s{s+2}, {size}")
    e(f"  s_mov_b32 s{s+3}, 0x00020000")

def kernel_begin(name):
    e(f".globl {name}")
    e(".p2align 8")
    e(f".type {name},@function")
    e(f"{name}:")

def kd(name, vgpr, sgpr=96):
    v = (vgpr + 7) // 8 * 8
    return f""".amdhsa_kernel {name}
  .amdhsa_next_free_vgpr {v}
  .amdhsa_next_free_sgpr {sgpr}
  .amdhsa_accum_offset {v}
  .amdhsa_group_segment_fixed_size 0
  .amdhsa_kernarg_size 96
  .amdhsa_user_sgpr_count 2
  .amdhsa_user_sgpr_kernarg_segment_ptr 1
  .amdhsa_system_sgpr_workgroup_id_x 1
.end_amdhsa_kernel"""

STAMP = "stamp" in EXP
def stamp(i, vreg=127):
    if not STAMP: return
    e("  s_memtime s[90:91]")
    e("  s_waitcnt lgkmcnt(0)")
    e(f"  v_writelane_b32 v{vreg}, s90, {i}")
def rstamp(i, vreg):
    if not STAMP: return
    e("  s_memrealtime s[90:91]")
    e("  s_waitcnt lgkmcnt(0)")
    e(f"  v_writelane_b32 v{vreg}, s90, {i}")
def stamp_flush(srd, vreg=127, tmp=126, mb=32):
    if not STAMP: return
    rstamp(63, vreg)
    e("  s_lshl_b32 s90, s2, 4")
    e("  s_add_u32 s90, s90, s24")
    e("  s_lshl_b32 s90, s90, 8")
    e(f"  s_add_u32 s90, s90, {mb<<20}")
    e(f"  v_and_b32 v{tmp}, 63, v0")
    e(f"  v_lshlrev_b32 v{tmp}, 2, v{tmp}")
    e(f"  buffer_store_dword v{vreg}, v{tmp}, s[{srd}:{srd+3}], s90 offen")

def vr(b, n=4): return f"v[{b}:{b+n-1}]"

K1_STAGE = 43008
K1Z_STAGE = 16384 + 12288
K1Z_NS = int(os.environ.get("ZNS", "4"))
K1Z_ST = K1Z_NS * K1Z_STAGE
K1_LDS = max(3 * K1_STAGE, K1Z_ST + 9472)
SV = 163

def gelu_pk(regs, tmp, vc1, vone):
    n = len(regs)
    for i, r in enumerate(regs):
        e(f"  v_pk_mul_f32 {vr(tmp+2*i,2)}, {vr(r,2)}, {vr(r,2)}")
    for i, r in enumerate(regs):
        e(f"  v_pk_fma_f32 {vr(tmp+2*i,2)}, {vr(tmp+2*i,2)}, {vr(vc1,2)}, {vr(vc1+2,2)}")
    for i, r in enumerate(regs):
        e(f"  v_pk_mul_f32 {vr(tmp+2*i,2)}, {vr(tmp+2*i,2)}, {vr(r,2)}")
    for i in range(2 * n):
        e(f"  v_exp_f32 v{tmp+i}, v{tmp+i}")
    e("  s_nop 0")
    for i, r in enumerate(regs):
        e(f"  v_pk_add_f32 {vr(tmp+2*i,2)}, {vr(tmp+2*i,2)}, {vr(vone,2)}")
    for i in range(2 * n):
        e(f"  v_rcp_f32 v{tmp+i}, v{tmp+i}")
    e("  s_nop 0")
    for i, r in enumerate(regs):
        e(f"  v_pk_mul_f32 {vr(r,2)}, {vr(r,2)}, {vr(tmp+2*i,2)}")

def k1_prefetch(z=False):
    if "nopf" in EXP: return
    if not z:
        e("  s_load_dwordx2 s[76:77], s[0:1], 16")
        e("  s_load_dwordx2 s[78:79], s[0:1], 40")
        e("  s_load_dwordx2 s[80:81], s[0:1], 56")
    e("  s_lshl_b32 s48, s2, 3")
    e("  s_add_u32 s48, s48, s24")
    e("  s_lshl_b32 s75, s48, 10")
    e("  v_lshlrev_b32 v160, 4, v1")
    e("  buffer_load_dwordx4 v[164:167], v160, s[12:15], s75 offen")
    srd(84, 6, 512 * 3072)
    e("  buffer_load_dwordx4 v[164:167], v160, s[84:87], s75 offen")
    srd(84, 8, 512 * 2752)
    e("  buffer_load_dwordx4 v[164:167], v160, s[84:87], s75 offen")
    if not z: e("  s_waitcnt lgkmcnt(0)")
def k1_prefetch_step(i):
    if "nopf" in EXP: return
    srd(84, 78, 2048 * 4096)
    e(f"  s_add_u32 s48, s75, {i << 20}")
    e(f"  buffer_load_dwordx4 v[164:167], v160, s[84:87], s48 offen")
    if i == 6:
        srd(84, 76, 512 * 1024)
        e("  buffer_load_dwordx4 v[164:167], v160, s[84:87], s75 offen")
    if i == 7:
        srd(84, 80, 688 * 1024)
        e("  buffer_load_dwordx4 v[164:167], v160, s[84:87], s75 offen")

def gen_k1():
    name = "k1_kernel"
    kernel_begin(name)
    e("  s_cmp_ge_u32 s2, 256")
    e("  s_cbranch_scc1 k1_end")
    if STAMP: e(f"  v_mov_b32 v{SV}, 0")
    stamp(0, SV)
    rstamp(59, SV)
    e("  s_load_dwordx4 s[4:7], s[0:1], 0")
    e("  s_load_dwordx2 s[8:9], s[0:1], 32")
    e("  s_load_dwordx2 s[10:11], s[0:1], 64")
    e("  s_load_dwordx4 s[60:63], s[0:1], 80")
    e("  v_and_b32 v1, 63, v0")
    e("  v_lshrrev_b32 v2, 6, v0")
    e("  s_nop 0")
    e("  v_readfirstlane_b32 s24, v2")
    e("  s_and_b32 s46, s2, 7")
    e("  s_lshr_b32 s47, s2, 3")
    e("  s_lshr_b32 s27, s47, 4")
    e("  s_lshr_b32 s28, s47, 1")
    e("  s_and_b32 s28, s28, 7")
    e("  s_lshr_b32 s48, s46, 2")
    e("  s_lshl_b32 s48, s48, 3")
    e("  s_add_u32 s28, s28, s48")
    e("  s_and_b32 s29, s46, 3")
    e("  s_lshl_b32 s29, s29, 1")
    e("  s_and_b32 s48, s47, 1")
    e("  s_add_u32 s29, s29, s48")
    e("  v_and_b32 v13, 15, v1")
    e("  v_lshrrev_b32 v14, 4, v1")
    e("  s_waitcnt lgkmcnt(0)")
    srd(12, 4, 2048 * 1024)
    srd(20, 62, WS_SIZE)
    e("  s_cmp_ge_u32 s24, 8")
    e("  s_cbranch_scc1 k1_load")
    e("  s_cmp_eq_u32 s27, 0")
    e("  s_cbranch_scc0 k1_zc")
    k1_prefetch()
    ACC = 16; XF = 76; WF = 116
    def acc(j, bi): return ACC + (j * 5 + bi) * 4
    def xf(u, bi): return XF + (u * 5 + bi) * 4
    def wf(u, j): return WF + (u * 3 + j) * 4
    e("  s_and_b32 s25, s24, 3")
    e("  s_lshr_b32 s26, s24, 2")
    e("  s_cmp_eq_u32 s26, 0")
    e("  s_cselect_b32 s31, 1, 0")
    e("  v_and_b32 v15, 7, v13")
    e("  v_xor_b32 v15, v15, v14")
    e("  v_lshlrev_b32 v15, 4, v15")
    e("  v_lshl_add_u32 v15, v13, 7, v15")
    e("  s_lshl_b32 s48, s26, 13")
    e("  v_add_u32 v4, s48, v15")
    e("  v_xor_b32 v7, 64, v4")
    for st in range(1, 3):
        e(f"  v_add_u32 v{4+st}, {st*K1_STAGE}, v4")
        e(f"  v_add_u32 v{7+st}, {st*K1_STAGE}, v7")
    e("  v_bfe_u32 v15, v1, 2, 2")
    e("  v_and_b32 v10, 1, v14")
    e("  v_lshlrev_b32 v10, 1, v10")
    e("  v_lshrrev_b32 v11, 1, v15")
    e("  v_or_b32 v10, v10, v11")
    e("  v_lshlrev_b32 v10, 1, v10")
    e("  v_bfe_u32 v11, v1, 1, 1")
    e("  s_lshl_b32 s48, s25, 1")
    e("  v_add_u32 v11, s48, v11")
    e("  v_xor_b32 v10, v10, v11")
    e("  v_lshlrev_b32 v10, 4, v10")
    e("  v_lshl_add_u32 v10, v14, 10, v10")
    e("  v_lshl_add_u32 v10, v15, 7, v10")
    e("  v_and_b32 v11, 1, v1")
    e("  v_lshl_add_u32 v10, v11, 3, v10")
    for st in range(1, 3):
        e(f"  v_add_u32 v{10+st}, {st*K1_STAGE}, v10")
    for r in range(ACC, ACC + 60):
        e(f"  v_mov_b32 v{r}, 0")
    def qreads(k, u):
        st = k % 3
        l = L("k1x")
        e("  s_cmp_eq_u32 s31, 0")
        e(f"  s_cbranch_scc1 {l}")
        e(f"  ds_read_b128 {vr(xf(u,4))}, v{4+3*u+st} offset:0")
        e(f"{l}:")
        for j in range(3):
            for q in range(2):
                e(f"  ds_read_b64_tr_b16 {vr(wf(u,j)+2*q,2)}, v{10+st} offset:{18432 + j*8192 + u*4096 + q*512}")
        for b in range(4):
            e(f"  ds_read_b128 {vr(xf(u,b))}, v{4+3*u+st} offset:{(1+b)*2048}")
    def qmfma(u):
        for j in range(3):
            for b in range(4):
                e(f"  v_mfma_f32_16x16x32_bf16 {vr(acc(j,b))}, {vr(wf(u,j))}, {vr(xf(u,b))}, {vr(acc(j,b))}")
        l = L("k1m")
        e("  s_cmp_eq_u32 s31, 0")
        e(f"  s_cbranch_scc1 {l}")
        for j in (1, 2):
            e(f"  v_mfma_f32_16x16x32_bf16 {vr(acc(j,4))}, {vr(wf(u,j))}, {vr(xf(u,4))}, {vr(acc(j,4))}")
        e(f"{l}:")
    if "notouch" not in EXP:
        e("  s_cmp_ge_u32 s24, 4")
        e("  s_cbranch_scc1 k1_tw%d" % 0)
        e("  s_lshl_b32 s48, s27, 1")
        e("  s_and_b32 s49, s47, 1")
        e("  s_add_u32 s48, s48, s49")
        e("  s_lshl_b32 s48, s48, 5")
        e("  s_lshl_b32 s49, s24, 3")
        e("  s_add_u32 s48, s48, s49")
        e("  s_lshl_b32 s49, s28, 7")
        e("  s_add_u32 s48, s48, s49")
        e("  s_lshl_b32 s48, s48, 10")
        e("  v_lshrrev_b32 v161, 3, v1")
        e("  v_and_b32 v162, 7, v1")
        e("  v_lshlrev_b32 v162, 7, v162")
        e("  v_lshl_add_u32 v161, v161, 10, v162")
        e("  buffer_load_dword v160, v161, s[12:15], s48 offen")
        e("  s_branch k1_td%d" % 0)
        e("k1_tw%d:" % 0)
        e("  s_and_b32 s48, s28, 7")
        e("  s_lshl_b32 s48, s48, 6")
        e("  v_add_u32 v161, s48, v1")
        srd(16, 6, 512 * 3072)
        e("  v_mul_u32_u24 v161, 3072, v161")
        e("  s_sub_u32 s48, s24, 4")
        e("  s_min_u32 s48, s48, 2")
        e("  s_lshl_b32 s48, s48, 10")
        e("  s_lshl_b32 s49, s29, 7")
        e("  s_add_u32 s48, s48, s49")
        e("  buffer_load_dword v160, v161, s[16:19], s48 offen")
        e("k1_td0:")
    e("  s_barrier")
    stamp(1, SV)
    qreads(0, 0)
    for k in range(8):
        if "pf2" in EXP:
            if k < 4:
                k1_prefetch_step(2*k); k1_prefetch_step(2*k+1)
        else:
            k1_prefetch_step(k)
        qreads(k, 1)
        e("  s_waitcnt lgkmcnt(10)")
        qmfma(0)
        e("  s_waitcnt lgkmcnt(0)")
        if k < 7:
            stamp(2 + 2*k, SV)
            e("  s_barrier")
            stamp(3 + 2*k, SV)
            qreads(k + 1, 0)
        qmfma(1)
    e("  s_nop 7")
    e("  s_nop 7")
    stamp(30, SV)
    e("  s_barrier")
    stamp(31, SV)
    e("  s_mul_i32 s48, s25, 13824")
    e("  v_lshrrev_b32 v2, 1, v14")
    e("  v_mul_u32_u24 v2, 2304, v2")
    e("  v_and_b32 v3, 1, v14")
    e("  v_lshl_add_u32 v2, v3, 3, v2")
    e("  v_lshl_add_u32 v2, v13, 4, v2")
    e("  s_lshl_b32 s49, s26, 10")
    e("  s_add_u32 s48, s48, s49")
    e("  v_add_u32 v2, s48, v2")
    for j in range(3):
        for b in range(4):
            a = acc(j, b)
            e(f"  v_cvt_pk_bf16_f32 v{a}, v{a}, v{a+1}")
            e(f"  v_cvt_pk_bf16_f32 v{a+1}, v{a+2}, v{a+3}")
            e(f"  ds_write_b64 v2, {vr(a,2)} offset:{j*4608 + (1+b)*256}")
    l = L("k1w")
    e("  s_cmp_eq_u32 s31, 0")
    e(f"  s_cbranch_scc1 {l}")
    for j in (1, 2):
        a = acc(j, 4)
        e(f"  v_cvt_pk_bf16_f32 v{a}, v{a}, v{a+1}")
        e(f"  v_cvt_pk_bf16_f32 v{a+1}, v{a+2}, v{a+3}")
        e(f"  ds_write_b64 v2, {vr(a,2)} offset:{j*4608}")
    e(f"{l}:")
    e("  s_waitcnt lgkmcnt(0)")
    e("  s_barrier")
    e("  s_mul_i32 s48, s25, 13824")
    e("  s_lshl_b32 s49, s26, 10")
    e("  s_add_u32 s48, s48, s49")
    e("  s_add_u32 s48, s48, 32")
    e("  v_lshlrev_b32 v2, 4, v1")
    e("  v_add_u32 v2, s48, v2")
    Q = 16; KR = 24; VR = 24; LG = 88; OA = 96
    for p in range(2):
        e(f"  ds_read_b128 {vr(Q+4*p)}, v2 offset:{p*2304 + 224}")
    for w in range(8):
        for p in range(2):
            e(f"  ds_read_b128 {vr(KR+8*w+4*p)}, v2 offset:{(2+p)*2304 + (7-w)*32}")
    e("  s_lshl_b32 s48, s28, 7")
    e("  s_lshl_b32 s49, s26, 6")
    e("  s_add_u32 s48, s48, s49")
    e("  v_add_u32 v3, s48, v1")
    for w in range(8):
        e(f"  v_mov_b32 v{LG+w}, 0")
    e("  s_waitcnt lgkmcnt(0)")
    for i in range(8):
        for w in range(8):
            e(f"  v_dot2c_f32_bf16 v{LG+w}, v{Q+i}, v{KR+8*w+i}")
    for w in range(8):
        for p in range(2):
            e(f"  ds_read_b128 {vr(VR+8*w+4*p)}, v2 offset:{(4+p)*2304 + (7-w)*32}")
    e(f"  v_mov_b32 v4, {fx(-1e9)}")
    e(f"  s_mov_b32 s48, {fx(0.25*LOG2E)}")
    for w in range(8):
        e(f"  v_mul_f32 v{LG+w}, s48, v{LG+w}")
    for w in range(1, 8):
        e(f"  v_cmp_le_u32 vcc, {2*w}, v3")
        e("  s_nop 1")
        e(f"  v_cndmask_b32 v{LG+w}, v4, v{LG+w}, vcc")
    e(f"  v_max3_f32 v5, v{LG}, v{LG+1}, v{LG+2}")
    e(f"  v_max3_f32 v5, v5, v{LG+3}, v{LG+4}")
    e(f"  v_max3_f32 v5, v5, v{LG+5}, v{LG+6}")
    e(f"  v_max_f32 v5, v5, v{LG+7}")
    for w in range(8):
        e(f"  v_sub_f32 v{LG+w}, v{LG+w}, v5")
    for w in range(8):
        e(f"  v_exp_f32 v{LG+w}, v{LG+w}")
    e("  s_nop 0")
    e(f"  v_add_f32 v5, v{LG}, v{LG+1}")
    for w in range(2, 8):
        e(f"  v_add_f32 v5, v5, v{LG+w}")
    e("  v_rcp_f32 v5, v5")
    e("  s_nop 0")
    for w in range(8):
        e(f"  v_mul_f32 v{LG+w}, v{LG+w}, v5")
    for w in range(8):
        e(f"  v_cvt_pk_bf16_f32 v{LG+w}, v{LG+w}, 0")
    for i in range(16):
        e(f"  v_mov_b32 v{OA+i}, 0")
    e("  s_waitcnt lgkmcnt(0)")
    for w in range(8):
        e(f"  v_lshlrev_b32 v6, 16, v{LG+w}")
        for i in range(8):
            e(f"  v_dot2c_f32_bf16 v{OA+2*i}, v{VR+8*w+i}, v{LG+w}")
            e(f"  v_dot2c_f32_bf16 v{OA+2*i+1}, v{VR+8*w+i}, v6")
    e("  s_nop 2")
    for i in range(8):
        e(f"  v_cvt_pk_bf16_f32 v{Q+i}, v{OA+2*i}, v{OA+2*i+1}")
    e("  s_lshl_b32 s48, s29, 2")
    e("  s_add_u32 s48, s48, s25")
    e("  s_lshl_b32 s48, s48, 5")
    e(f"  s_add_u32 s48, s48, {WS_O}")
    e("  v_lshlrev_b32 v3, 10, v3")
    e(f"  buffer_store_dwordx4 {vr(Q)}, v3, s[20:23], s48 offen")
    e(f"  buffer_store_dwordx4 {vr(Q+4)}, v3, s[20:23], s48 offen offset:16")
    stamp(40, SV)
    stamp_flush(20, SV, SV-1, 34)
    e("  s_endpgm")
    e("k1_zc:")
    k1_prefetch(True)
    A2 = 16; A1 = 40; FR = 64
    e("  s_and_b32 s25, s24, 3")
    e("  s_lshr_b32 s26, s24, 2")
    e("  s_mul_i32 s30, s29, 5")
    e("  s_min_u32 s48, s29, 3")
    e("  s_add_u32 s30, s30, s48")
    e("  s_cmp_lt_u32 s29, 3")
    e("  s_cselect_b32 s50, 6, 5")
    e("  s_mul_i32 s49, s26, 3")
    e("  s_add_u32 s49, s49, 2")
    e("  s_cmp_lt_u32 s49, s50")
    e("  s_cselect_b32 s57, 1, 0")
    e("  v_and_b32 v15, 7, v13")
    e("  v_xor_b32 v15, v15, v14")
    e("  v_lshlrev_b32 v15, 4, v15")
    e("  v_lshl_add_u32 v15, v13, 7, v15")
    e("  s_lshl_b32 s48, s25, 12")
    e("  v_add_u32 v104, s48, v15")
    e("  v_xor_b32 v105, 64, v104")
    e("  v_bfe_u32 v15, v1, 2, 2")
    e("  v_lshl_add_u32 v15, v14, 3, v15")
    e("  v_mul_u32_u24 v15, 192, v15")
    e("  v_and_b32 v6, 1, v1")
    e("  v_lshl_add_u32 v15, v6, 3, v15")
    e("  v_bfe_u32 v6, v1, 1, 1")
    e("  v_and_b32 v7, 1, v14")
    e("  v_lshlrev_b32 v7, 1, v7")
    e("  s_mul_i32 s48, s26, 6")
    for fb in range(3):
        e(f"  s_add_u32 s49, s48, {2*fb}")
        e(f"  v_add_u32 v8, s49, v6")
        e(f"  v_xor_b32 v8, v8, v7")
        e(f"  v_lshl_add_u32 v8, v8, 4, v15")
        e(f"  v_add_u32 v{106+fb}, 16384, v8")
    for sp in range(1, (K1Z_NS + 1) // 2):
        for r in range(5):
            e(f"  v_add_u32 v{104+5*sp+r}, {2*sp*K1Z_STAGE}, v{104+r}")
    for r in range(A2, A2 + 48):
        e(f"  v_mov_b32 v{r}, 0")
    for r in (124, 125): e(f"  v_mov_b32 v{r}, {fx(-GC1)}")
    for r in (126, 127): e(f"  v_mov_b32 v{r}, {fx(-GC0)}")
    for r in (128, 129): e(f"  v_mov_b32 v{r}, 1.0")
    e("  s_lshl_b32 s48, s28, 7")
    e("  s_lshl_b32 s49, s25, 5")
    e("  s_add_u32 s48, s48, s49")
    e("  v_add_u32 v2, s48, v13")
    e("  s_movk_i32 s48, 2752")
    e("  v_mul_lo_u32 v2, v2, s48")
    e("  v_lshl_add_u32 v2, v14, 3, v2")
    e("  s_mul_i32 s49, s26, 3")
    e("  s_add_u32 s49, s49, s30")
    e("  s_lshl_b32 s58, s49, 5")
    e(f"  s_add_u32 s58, s58, {WS_Z}")
    e("  s_lshl_b32 s48, s28, 7")
    e("  s_lshl_b32 s49, s25, 5")
    e("  s_add_u32 s48, s48, s49")
    e("  v_add_u32 v3, s48, v13")
    e("  v_mul_u32_u24 v3, 192, v3")
    e("  v_lshl_add_u32 v3, v14, 3, v3")
    e("  s_mul_i32 s56, s29, 393216")
    e("  s_mul_i32 s49, s26, 96")
    e("  s_add_u32 s56, s56, s49")
    e(f"  s_add_u32 s56, s56, {WS_Z2}")
    def zreads(k, u):
        sl = k % K1Z_NS; st = (k * 2 + u) % 2; b = FR + st * 20
        sp = sl // 2; so = (sl % 2) * K1Z_STAGE
        for fb in range(3):
            for q in range(2):
                e(f"  ds_read_b64_tr_b16 {vr(b+4*fb+2*q,2)}, v{106+5*sp+fb} offset:{so + u*32*192 + q*768}")
        for tb in range(2):
            e(f"  ds_read_b128 {vr(b+12+4*tb)}, v{104+5*sp+u} offset:{so + tb*2048}")
    def zmfma(k, u):
        st = (k * 2 + u) % 2; b = FR + st * 20
        AC = A2 if k < 8 else A1
        for fb in range(3):
            for tb in range(2):
                a = AC + (fb * 2 + tb) * 4
                e(f"  v_mfma_f32_16x16x32_bf16 {vr(a)}, {vr(b+4*fb)}, {vr(b+12+4*tb)}, {vr(a)}")
    def cond_fb2(fn):
        l = L("k1z")
        e("  s_cmp_eq_u32 s57, 0")
        e(f"  s_cbranch_scc1 {l}")
        fn()
        e(f"{l}:")
    TMP = 130
    def gelu_fb(AC, fb):
        regs = []
        for tb in range(2):
            a = AC + (fb * 2 + tb) * 4
            regs += [a, a + 2]
        gelu_pk(regs, TMP, 124, 128)
    def store_fb(AC, fb, colofs, norm):
        for tb in range(2):
            a = AC + (fb * 2 + tb) * 4
            if norm:
                for r in range(4):
                    e(f"  v_fma_f32 v{a+r}, v{a+r}, v{140+2*tb}, -v{141+2*tb}")
            e(f"  v_cvt_pk_bf16_f32 v{a}, v{a}, v{a+1}")
            e(f"  v_cvt_pk_bf16_f32 v{a+1}, v{a+2}, v{a+3}")
            if norm:
                e(f"  s_add_u32 s48, s56, {tb*16*192}")
                e(f"  buffer_store_dwordx2 {vr(a,2)}, v3, s[20:23], s48 offen offset:{fb*32}")
            else:
                e(f"  s_add_u32 s48, s58, {colofs + tb*16*2752}")
                e(f"  buffer_store_dwordx2 {vr(a,2)}, v2, s[20:23], s48 offen offset:{fb*32}")
    def stat_fb(fb):
        for tb in range(2):
            a = A2 + (fb * 2 + tb) * 4
            for r in range(4):
                e(f"  v_add_f32 v{140+2*tb}, v{140+2*tb}, v{a+r}")
                e(f"  v_fmac_f32 v{141+2*tb}, v{a+r}, v{a+r}")
    srd(64, 60, 256)
    e("  s_memrealtime s[90:91]")
    e("  s_waitcnt lgkmcnt(0)")
    e("  s_or_b32 s54, s90, 1")
    e("  v_mov_b32 v138, s54")
    e("  v_mov_b32 v139, 0")
    e("  v_mov_b32 v161, 0")
    e("  s_lshl_b32 s59, s28, 2")
    lwn = L("k1n")
    e("  s_cmp_ge_u32 s24, 1")
    e(f"  s_cbranch_scc1 {lwn}")
    e("  s_mov_b64 exec, 1")
    e("  buffer_atomic_cmpswap v[138:139], v161, s[64:67], s59 offen offset:64 sc0 sc1")
    e("  s_mov_b64 exec, -1")
    e(f"{lwn}:")
    if "notouch" not in EXP:
        e("  s_cmp_ge_u32 s24, 4")
        e("  s_cbranch_scc1 k1_tw%d" % 1)
        e("  s_lshl_b32 s48, s27, 1")
        e("  s_and_b32 s49, s47, 1")
        e("  s_add_u32 s48, s48, s49")
        e("  s_lshl_b32 s48, s48, 5")
        e("  s_lshl_b32 s49, s24, 3")
        e("  s_add_u32 s48, s48, s49")
        e("  s_lshl_b32 s49, s28, 7")
        e("  s_add_u32 s48, s48, s49")
        e("  s_lshl_b32 s48, s48, 10")
        e("  v_lshrrev_b32 v161, 3, v1")
        e("  v_and_b32 v162, 7, v1")
        e("  v_lshlrev_b32 v162, 7, v162")
        e("  v_lshl_add_u32 v161, v161, 10, v162")
        e("  buffer_load_dword v160, v161, s[12:15], s48 offen")
        e("  s_branch k1_td%d" % 1)
        e("k1_tw%d:" % 1)
        e("  s_and_b32 s48, s28, 7")
        e("  s_lshl_b32 s48, s48, 6")
        e("  v_add_u32 v161, s48, v1")
        srd(16, 8, 512 * 2752)
        e("  s_movk_i32 s49, 2752")
        e("  v_mul_lo_u32 v161, v161, s49")
        e("  s_lshl_b32 s48, s30, 5")
        e("  s_and_b32 s49, s24, 1")
        e("  s_lshl_b32 s49, s49, 7")
        e("  s_add_u32 s48, s48, s49")
        e("  s_cmp_lt_u32 s24, 6")
        e("  s_cselect_b32 s49, 1376, 0")
        e("  s_add_u32 s48, s48, s49")
        e("  buffer_load_dword v160, v161, s[16:19], s48 offen")
        e("  buffer_load_dword v160, v161, s[16:19], s48 offen offset:60")
        e("k1_td1:")
    e("  s_barrier")
    stamp(1, SV)
    zreads(0, 0)
    for k in range(16):
        zreads(k, 1)
        e("  s_waitcnt lgkmcnt(8)")
        zmfma(k, 0)
        e("  s_waitcnt lgkmcnt(0)")
        if k < 15:
            if k < 12: stamp(2 + 2*k, SV)
            e("  s_barrier")
            if k < 12: stamp(3 + 2*k, SV)
            zreads(k + 1, 0)
        zmfma(k, 1)
        if k == 7:
            e("  s_nop 7")
            e("  s_nop 7")
            stamp(30, SV)
            for r in range(140, 144): e(f"  v_mov_b32 v{r}, 0")
            for fb in range(2):
                gelu_fb(A2, fb); stat_fb(fb)
            cond_fb2(lambda: (gelu_fb(A2, 2), stat_fb(2)))
            e("  s_lshl_b32 s48, s26, 12")
            e("  s_lshl_b32 s49, s25, 8")
            e("  s_add_u32 s48, s48, s49")
            e(f"  s_add_u32 s48, s48, {K1Z_ST}")
            e("  v_lshlrev_b32 v4, 10, v14")
            e("  v_lshl_add_u32 v4, v13, 3, v4")
            e("  v_add_u32 v4, s48, v4")
            for tb in range(2):
                e(f"  ds_write_b64 v4, {vr(140+2*tb,2)} offset:{tb*128}")
            lwn = L("k1n")
            e("  s_cmp_ge_u32 s24, 1")
            e(f"  s_cbranch_scc1 {lwn}")
            e("  s_waitcnt vmcnt(0)")
            e("  v_readfirstlane_b32 s53, v138")
            e("  s_cmp_eq_u32 s53, 0")
            e("  s_cselect_b32 s54, s54, s53")
            e("  v_mov_b32 v5, s54")
            e(f"  v_mov_b32 v6, {K1Z_ST + 9216}")
            e("  ds_write_b32 v6, v5")
            e(f"{lwn}:")
            e("  s_waitcnt lgkmcnt(0)")
            e("  s_barrier")
            lw = L("k1p")
            e("  s_cmp_ge_u32 s24, 2")
            e(f"  s_cbranch_scc1 {lw}")
            e("  v_lshlrev_b32 v4, 3, v0")
            e(f"  v_add_u32 v4, {K1Z_ST}, v4")
            for t in range(8):
                e(f"  ds_read_b64 {vr(144+2*t,2)}, v4 offset:{t*1024}")
            e("  s_waitcnt lgkmcnt(0)")
            for t in range(1, 8):
                e(f"  v_add_f32 v144, v144, v{144+2*t}")
                e(f"  v_add_f32 v145, v145, v{145+2*t}")
            e(f"  v_mov_b32 v6, {K1Z_ST + 9216}")
            e("  ds_read_b32 v147, v6")
            e("  v_mov_b32 v146, v145")
            e("  s_waitcnt lgkmcnt(0)")
            e("  v_mov_b32 v145, v147")
            e("  s_lshl_b32 s48, s28, 7")
            e("  v_add_u32 v4, s48, v0")
            e("  v_lshlrev_b32 v4, 4, v4")
            e("  s_lshl_b32 s48, s29, 15")
            e(f"  s_add_u32 s48, s48, {WS_ST}")
            e("  buffer_store_dwordx4 v[144:147], v4, s[20:23], s48 offen sc0 sc1")
            e(f"{lw}:")
            stamp(31, SV)
    e("  s_nop 7")
    e("  s_nop 7")
    stamp(32, SV)
    e("  s_lshl_b32 s48, s25, 5")
    e("  v_add_u32 v4, s48, v13")
    e("  v_mul_u32_u24 v4, 192, v4")
    e("  v_lshl_add_u32 v4, v14, 3, v4")
    e("  s_mul_i32 s48, s26, 96")
    e(f"  s_add_u32 s48, s48, {(12 % K1Z_NS) * K1Z_STAGE}")
    e("  v_add_u32 v4, s48, v4")
    def lds_fb(AC, fb, base, norm):
        for tb in range(2):
            a = AC + (fb * 2 + tb) * 4
            if norm:
                for r in range(4):
                    e(f"  v_fma_f32 v{a+r}, v{a+r}, v{140+2*tb}, -v{141+2*tb}")
            e(f"  v_cvt_pk_bf16_f32 v{a}, v{a}, v{a+1}")
            e(f"  v_cvt_pk_bf16_f32 v{a+1}, v{a+2}, v{a+3}")
            e(f"  ds_write_b64 v4, {vr(a,2)} offset:{base + tb*16*192 + fb*32}")
    for fb in range(2):
        gelu_fb(A1, fb); lds_fb(A1, fb, 0, False)
    cond_fb2(lambda: (gelu_fb(A1, 2), lds_fb(A1, 2, 0, False)))
    e("  s_waitcnt lgkmcnt(0)")
    stamp(33, SV)
    e("  s_barrier")
    stamp(34, SV)
    e("  s_lshl_b32 s48, s25, 8")
    e(f"  s_add_u32 s48, s48, {K1Z_ST + 8192}")
    e("  v_lshlrev_b32 v5, 3, v13")
    e("  v_add_u32 v5, s48, v5")
    for tb in range(2):
        e(f"  ds_read_b64 {vr(140+2*tb,2)}, v5 offset:{tb*128}")
    e("  s_mul_i32 s48, s24, 3072")
    e("  v_lshlrev_b32 v6, 4, v1")
    e("  v_add_u32 v6, s48, v6")
    e(f"  v_add_u32 v7, {(12 % K1Z_NS) * K1Z_STAGE}, v6")
    e("  s_mul_i32 s56, s29, 393216")
    e("  s_mul_i32 s49, s28, 24576")
    e("  s_add_u32 s56, s56, s49")
    e("  s_waitcnt lgkmcnt(0)")
    for fb in range(2):
        lds_fb(A2, fb, K1Z_STAGE, True)
    cond_fb2(lambda: lds_fb(A2, 2, K1Z_STAGE, True))
    e("  s_waitcnt lgkmcnt(0)")
    e("  s_barrier")
    for j in range(3):
        e(f"  ds_read_b128 {vr(80+4*j)}, v7 offset:{K1Z_STAGE + j*1024}")
    e("  s_waitcnt lgkmcnt(0)")
    e(f"  s_add_u32 s48, s56, {WS_Z2}")
    for j in range(3):
        e(f"  buffer_store_dwordx4 {vr(80+4*j)}, v6, s[20:23], s48 offen offset:{j*1024}")
    stamp(40, SV)
    stamp_flush(20, SV, SV-1, 34)
    e("  s_endpgm")
    e("k1_load:")
    e("  s_sub_u32 s25, s24, 8")
    e("  v_lshrrev_b32 v4, 3, v1")
    e("  v_and_b32 v5, 7, v1")
    e("  v_xor_b32 v5, v5, v4")
    e("  v_lshlrev_b32 v5, 4, v5")
    e("  v_lshl_add_u32 v2, v4, 10, v5")
    e("  s_lshl_b32 s35, s25, 10")
    e("  s_cmp_eq_u32 s27, 0")
    e("  s_cbranch_scc0 k1_lz")
    srd(16, 6, 512 * 3072)
    e("  s_and_b32 s48, s25, 1")
    e("  s_lshl_b32 s48, s48, 2")
    e("  v_lshrrev_b32 v5, 4, v1")
    e("  v_and_b32 v5, 1, v5")
    e("  v_lshlrev_b32 v5, 1, v5")
    e("  v_or_b32 v5, s48, v5")
    e("  v_and_b32 v6, 7, v1")
    e("  v_xor_b32 v5, v5, v6")
    e("  v_lshlrev_b32 v5, 4, v5")
    e("  v_mul_u32_u24 v3, 3072, v4")
    e("  v_add_u32 v3, v3, v5")
    e(f"  s_mul_i32 s36, s25, {8*3072}")
    e("  s_lshl_b32 s48, s29, 7")
    e("  s_add_u32 s36, s36, s48")
    e("  s_lshl_b32 s48, s28, 17")
    e("  s_lshl_b32 s49, s25, 13")
    e("  s_add_u32 s32, s48, s49")
    e("  s_sub_u32 s32, s32, 16384")
    e("  s_cmp_lt_i32 s32, 0")
    e("  s_cselect_b32 s33, 0, s32")
    e("  s_cmp_lt_u32 s25, 2")
    e("  s_cselect_b32 s43, 1, 0")
    q = []
    def qissue(k):
        sb = (k % 3) * K1_STAGE
        for j in range(3):
            for ii in range(2):
                e(f"  s_add_u32 m0, s35, {sb + 18432 + j*8192 + ii*4096}")
                e(f"  s_add_u32 s42, s36, {k*64*3072 + j*1024 + ii*32*3072}")
                e("  buffer_load_dwordx4 v3, s[16:19], s42 offen lds"); q.append(k)
        for m in range(4):
            e(f"  s_add_u32 m0, s35, {sb + m*4096}")
            e(f"  s_add_u32 s42, s{33 if m == 0 else 32}, {k*128 + m*32*1024}")
            e("  buffer_load_dwordx4 v2, s[12:15], s42 offen lds"); q.append(k)
        l = L("k1h")
        e("  s_cmp_eq_u32 s43, 0")
        e(f"  s_cbranch_scc1 {l}")
        e(f"  s_add_u32 m0, s35, {sb + 16384}")
        e(f"  s_add_u32 s42, s32, {k*128 + 128*1024}")
        e("  buffer_load_dwordx4 v2, s[12:15], s42 offen lds")
        e(f"{l}:")
    def wait_for(k):
        idx = max(i for i, o in enumerate(q) if o == k)
        e(f"  s_waitcnt vmcnt({min(63, len(q) - 1 - idx)})")
    def gate_load(qq):
        srd(52, 10, 1024)
        e("  s_lshl_b32 s74, s2, 3")
        e("  s_lshl_b32 s49, s25, 1")
        e("  s_add_u32 s74, s74, s49")
        e("  s_lshl_b32 s49, s74, 10")
        e("  v_lshlrev_b32 v8, 4, v1")
        e("  buffer_load_dwordx4 v[140:143], v8, s[12:15], s49 offen")
        e("  buffer_load_dwordx4 v[148:151], v8, s[12:15], s49 offen offset:1024")
        e("  buffer_load_dwordx4 v[144:147], v8, s[52:55], 0 offen")
        qq += ["g", "g", "g"]
    def gate(qq):
        for rr in range(2):
            e(f"  v_mov_b32 v{152+rr}, 0")
            for i in range(4):
                e(f"  v_dot2c_f32_bf16 v{152+rr}, v{140+8*rr+i}, v{144+i}")
        e("  s_nop 3")
        for sh in (8, 4, 2, 1):
            for rr in range(2):
                e(f"  v_add_f32_dpp v{152+rr}, v{152+rr}, v{152+rr} row_ror:{sh} row_mask:0xf bank_mask:0xf")
            e("  s_nop 1")
        for rr in range(2):
            e(f"  v_readlane_b32 s70, v{152+rr}, 0")
            e(f"  v_readlane_b32 s71, v{152+rr}, 16")
            e(f"  v_readlane_b32 s72, v{152+rr}, 32")
            e(f"  v_readlane_b32 s73, v{152+rr}, 48")
            e("  s_nop 1")
            e(f"  v_mov_b32 v{154+rr}, s70")
            e(f"  v_add_f32 v{154+rr}, s71, v{154+rr}")
            e(f"  v_add_f32 v{154+rr}, s72, v{154+rr}")
            e(f"  v_add_f32 v{154+rr}, s73, v{154+rr}")
            e(f"  v_mul_f32 v{154+rr}, {fx(-LOG2E)}, v{154+rr}")
            e(f"  v_exp_f32 v{154+rr}, v{154+rr}")
            e("  s_nop 0")
            e(f"  v_add_f32 v{154+rr}, 1.0, v{154+rr}")
            e(f"  v_rcp_f32 v{154+rr}, v{154+rr}")
        e("  s_lshl_b32 s48, s74, 2")
        e(f"  s_add_u32 s48, s48, {WS_G}")
        e("  v_mov_b32 v9, 0")
        e("  s_mov_b64 exec, 1")
        e("  buffer_store_dwordx2 v[154:155], v9, s[20:23], s48 offen")
        e("  s_mov_b64 exec, -1")
        qq.append("g")
    stamp(1, SV)
    for k in range(2):
        qissue(k); stamp(2 + k, SV)
    stamp(5, SV)
    for k in range(8):
        wait_for(k)
        stamp(6 + 3*k, SV)
        e("  s_barrier")
        stamp(7 + 3*k, SV)
        if k + 2 < 8: qissue(k + 2)
        if k == 0: gate_load(q)
        if k == 4: gate(q)
        stamp(8 + 3*k, SV)
    stamp_flush(20, SV, SV-1, 34)
    e("  s_endpgm")
    e("k1_lz:")
    srd(16, 8, 512 * 2752)
    for p in range(3):
        e(f"  v_add_u32 v6, {64*p}, v1")
        e("  v_mul_u32_u24 v3, 0x5556, v6")
        e("  v_lshrrev_b32 v3, 18, v3")
        e("  v_mul_u32_u24 v4, 12, v3")
        e("  v_sub_u32 v4, v6, v4")
        e("  v_bfe_u32 v5, v3, 3, 1")
        e("  v_lshlrev_b32 v5, 1, v5")
        e("  v_xor_b32 v4, v4, v5")
        e("  s_movk_i32 s48, 2752")
        e("  v_mul_lo_u32 v3, v3, s48")
        e(f"  v_lshl_add_u32 v{20+p}, v4, 4, v3")
    e("  s_mul_i32 s30, s29, 5")
    e("  s_min_u32 s48, s29, 3")
    e("  s_add_u32 s30, s30, s48")
    e("  s_lshl_b32 s48, s30, 5")
    e(f"  s_mul_i32 s49, s25, {16*2752}")
    e("  s_add_u32 s36, s48, s49")
    e("  s_mul_i32 s37, s25, 3072")
    e("  s_add_u32 s37, s37, 16384")
    e("  s_lshl_b32 s48, s28, 17")
    e("  s_lshl_b32 s49, s25, 13")
    e("  s_add_u32 s32, s48, s49")
    q2 = []
    def zissue(s_):
        sb = (s_ % K1Z_NS) * K1Z_STAGE
        k = s_ & 7
        co = 1376 if s_ < 8 else 0
        for p in range(3):
            e(f"  s_add_u32 m0, s37, {sb + p*1024}")
            e(f"  s_add_u32 s42, s36, {k*64*2752 + co}")
            e(f"  buffer_load_dwordx4 v{20+p}, s[16:19], s42 offen lds"); q2.append(s_)
        for m in range(4):
            e(f"  s_add_u32 m0, s35, {sb + m*4096}")
            e(f"  s_add_u32 s42, s32, {k*128 + m*32*1024}")
            e("  buffer_load_dwordx4 v2, s[12:15], s42 offen lds"); q2.append(s_)
    def wait2(k):
        idx = max(i for i, o in enumerate(q2) if o == k)
        e(f"  s_waitcnt vmcnt({min(63, len(q2) - 1 - idx)})")
    srd(64, 60, 256)
    e("  v_subrev_u32 v24, 512, v0")
    e("  s_lshl_b32 s48, s28, 7")
    e("  v_add_u32 v25, s48, v24")
    e("  v_lshlrev_b32 v25, 4, v25")
    e("  s_memrealtime s[90:91]")
    e("  s_waitcnt lgkmcnt(0)")
    e("  s_or_b32 s54, s90, 1")
    e("  v_mov_b32 v158, s54")
    e("  v_mov_b32 v159, 0")
    e("  v_mov_b32 v157, 0")
    def gran_loads():
        for pl in range(8):
            e(f"  s_mov_b32 s48, {WS_ST + pl*32768}")
            e(f"  buffer_load_dwordx4 {vr(64+4*pl)}, v25, s[20:23], s48 offen sc0 sc1")
    for k in range(2): zissue(k)
    for k in range(16):
        if k == 15:
            lw = L("k1p"); lw2 = L("k1p")
            e("  s_cmp_ge_u32 s25, 2")
            e(f"  s_cbranch_scc1 {lw}")
            e("  s_waitcnt vmcnt(8)")
            e(f"  s_branch {lw2}")
            e(f"{lw}:")
            wait2(k)
            e(f"{lw2}:")
        else:
            wait2(k)
        e("  s_barrier")
        if k == 0:
            for kk in range(2, K1Z_NS): zissue(kk)
            gate_load(q2)
        if k >= 1 and k - 1 + K1Z_NS < 16: zissue(k - 1 + K1Z_NS)
        if k == 5: gate(q2)
        if k == 8:
            e("  s_barrier")
            e(f"  v_mov_b32 v6, {K1Z_ST + 9216}")
            e("  ds_read_b32 v158, v6")
            e("  s_waitcnt lgkmcnt(0)")
        if k == PK:
            lw = L("k1p")
            e("  s_cmp_ge_u32 s25, 2")
            e(f"  s_cbranch_scc1 {lw}")
            gran_loads()
            e(f"{lw}:")
    lw = L("k1p")
    e("  s_cmp_ge_u32 s25, 2")
    e(f"  s_cbranch_scc1 {lw}")
    e("  v_readfirstlane_b32 s54, v158")
    e("  s_mov_b32 s52, 0")
    stamp(3, SV)
    e("k1_poll:")
    e("  s_waitcnt vmcnt(0)")
    e("  v_xor_b32 v5, s54, v65")
    for pl in range(8):
        for hh in (1, 3):
            if pl == 0 and hh == 1: continue
            e(f"  v_xor_b32 v6, s54, v{64+4*pl+hh}")
            e("  v_or_b32 v5, v5, v6")
    e("  v_cmp_ne_u32 vcc, 0, v5")
    e("  s_add_u32 s52, s52, 1")
    e("  s_cbranch_vccz k1_got")
    e("  s_cmp_lt_u32 s52, 0x40000")
    e("  s_cbranch_scc0 k1_got")
    e("  s_sleep 2")
    gran_loads()
    e("  s_branch k1_poll")
    e("k1_got:")
    stamp(5, SV)
    if STAMP: e(f"  v_writelane_b32 v{SV}, s52, 58")
    for t in range(1, 8):
        e(f"  v_add_f32 v64, v64, v{64+4*t}")
        e(f"  v_add_f32 v66, v66, v{66+4*t}")
    e(f"  v_mul_f32 v144, {fx(1.0/688)}, v64")
    e(f"  v_mul_f32 v145, {fx(1.0/688)}, v66")
    e("  v_fma_f32 v145, -v144, v144, v145")
    e("  v_max_f32 v145, 0, v145")
    e(f"  v_add_f32 v145, {fx(1e-5)}, v145")
    e("  v_rsq_f32 v146, v145")
    e("  s_nop 0")
    e("  v_mul_f32 v147, v144, v146")
    e("  v_lshlrev_b32 v4, 3, v24")
    e(f"  v_add_u32 v4, {K1Z_ST + 8192}, v4")
    e(f"  ds_write_b64 v4, v[146:147]")
    e("  s_waitcnt lgkmcnt(0)")
    e(f"{lw}:")
    stamp(7, SV)
    stamp_flush(20, SV, SV-1, 34)
    e("  s_barrier")
    e("  s_mul_i32 s48, s25, 6144")
    e("  v_lshlrev_b32 v6, 4, v1")
    e("  v_add_u32 v6, s48, v6")
    e(f"  v_add_u32 v7, {(12 % K1Z_NS) * K1Z_STAGE}, v6")
    for j in range(6):
        e(f"  ds_read_b128 {vr(64+4*j)}, v7 offset:{j*1024}")
    e("  s_mul_i32 s56, s29, 393216")
    e("  s_mul_i32 s49, s28, 24576")
    e("  s_add_u32 s56, s56, s49")
    e(f"  s_add_u32 s56, s56, {WS_Z1}")
    for j in range(6):
        e(f"  s_waitcnt lgkmcnt({5-j})")
        if j < 4:
            e(f"  buffer_store_dwordx4 {vr(64+4*j)}, v6, s[20:23], s56 offen offset:{j*1024}")
        else:
            e(f"  s_add_u32 s48, s56, 4096")
            e(f"  buffer_store_dwordx4 {vr(64+4*j)}, v6, s[20:23], s48 offen offset:{(j-4)*1024}")
    e("k1_end:")
    e("  s_endpgm")
    return kd(name, 168)

K2_NS = 8
K2_ZOFF = K2_NS * 8192
K2_LDS = K2_ZOFF + K2_NS * 12288
K2_NIT = 32
def sched(n, ns, issue, wait, bar, extra=None, burst=2, lag=1):
    nxt = 0
    for k in range(min(2, n)):
        issue(k); nxt = k + 1
    for k in range(n):
        wait(k)
        bar(k)
        lim = min(n, k - 1 + ns + (1 if k == 0 else 0))
        lim = min(n, max(k - 1, -1) + ns + 1) if k == 0 else min(n, k - 1 + ns + 0)
        c = 0
        while nxt < n and nxt <= max(k - lag, -1) + ns and c < burst:
            issue(nxt); nxt += 1; c += 1
        if extra: extra(k)

def gen_k2():
    name = "k2_kernel"
    kernel_begin(name)
    e("  s_cmp_ge_u32 s2, 256")
    e("  s_cbranch_scc1 k2_end")
    if STAMP: e("  v_mov_b32 v126, 0")
    stamp(0, 126)
    rstamp(59, 126)
    e("  s_load_dwordx4 s[4:7], s[0:1], 40")
    e("  s_load_dwordx2 s[8:9], s[0:1], 88")
    e("  v_and_b32 v1, 63, v0")
    e("  v_lshrrev_b32 v2, 6, v0")
    e("  s_nop 0")
    e("  v_readfirstlane_b32 s24, v2")
    e("  s_and_b32 s46, s2, 7")
    e("  s_lshr_b32 s47, s2, 3")
    e("  s_lshr_b32 s28, s46, 1")
    e("  s_lshl_b32 s28, s28, 3")
    e("  s_lshr_b32 s48, s47, 2")
    e("  s_add_u32 s28, s28, s48")
    e("  s_and_b32 s29, s46, 1")
    e("  s_lshl_b32 s29, s29, 2")
    e("  s_and_b32 s48, s47, 3")
    e("  s_add_u32 s29, s29, s48")
    e("  s_mul_i32 s30, s29, 5")
    e("  s_min_u32 s48, s29, 3")
    e("  s_add_u32 s30, s30, s48")
    e("  s_waitcnt lgkmcnt(0)")
    srd(12, 4, 2048 * 4096)
    srd(16, 6, 4096)
    srd(20, 8, WS_SIZE)
    e("  s_cmp_ge_u32 s24, 4")
    e("  s_cbranch_scc1 k2_prod")
    e("  s_and_b32 s25, s24, 1")
    e("  s_lshr_b32 s26, s24, 1")
    e("  v_and_b32 v13, 15, v1")
    e("  v_lshrrev_b32 v14, 4, v1")
    ACC = 16
    FR = 40
    e("  v_and_b32 v15, 7, v13")
    e("  v_xor_b32 v15, v15, v14")
    e("  v_lshlrev_b32 v15, 4, v15")
    e("  v_lshl_add_u32 v15, v13, 7, v15")
    e("  s_lshl_b32 s48, s26, 12")
    e("  v_add_u32 v122, s48, v15")
    e("  v_xor_b32 v123, 64, v122")
    e("  v_bfe_u32 v15, v1, 2, 2")
    e("  v_lshl_add_u32 v15, v14, 3, v15")
    e("  v_mul_u32_u24 v15, 192, v15")
    e("  v_and_b32 v6, 1, v1")
    e("  v_lshl_add_u32 v15, v6, 3, v15")
    e("  v_bfe_u32 v6, v1, 1, 1")
    e("  v_and_b32 v7, 1, v14")
    e("  v_lshlrev_b32 v7, 1, v7")
    e("  s_mul_i32 s48, s25, 6")
    for fb in range(3):
        e(f"  s_add_u32 s49, s48, {2*fb}")
        e(f"  v_add_u32 v8, s49, v6")
        e(f"  v_xor_b32 v8, v8, v7")
        e(f"  v_lshl_add_u32 v8, v8, 4, v15")
        e(f"  v_add_u32 v{2+fb}, {K2_ZOFF}, v8")
        e(f"  v_add_u32 v{9+fb}, {K2_ZOFF + 4*12288}, v8")
    for r in range(ACC, ACC + 24):
        e(f"  v_mov_b32 v{r}, 0")
    e("  s_lshl_b32 s48, s28, 6")
    e("  s_lshl_b32 s49, s26, 5")
    e("  s_add_u32 s48, s48, s49")
    e("  v_add_u32 v104, s48, v13")
    e("  v_lshlrev_b32 v105, 1, v104")
    e("  v_mul_u32_u24 v106, 192, v104")
    e("  v_lshl_add_u32 v106, v14, 3, v106")
    e("  s_mul_i32 s49, s25, 3")
    e("  s_add_u32 s49, s49, s30")
    e("  s_lshl_b32 s31, s49, 5")
    e("  s_mul_i32 s51, s29, 393216")
    e("  s_mul_i32 s49, s25, 96")
    e("  s_add_u32 s51, s51, s49")
    e(f"  s_add_u32 s51, s51, {WS_Z1}")
    def epi_prefetch():
        e("  buffer_load_ushort v120, v105, s[16:19], 0 offen")
        e("  buffer_load_ushort v121, v105, s[16:19], 0 offen offset:32")
        for tb in range(2):
            for fb in range(3):
                e(f"  s_add_u32 s49, s51, {tb*16*192}")
                e(f"  buffer_load_dwordx2 {vr(108+2*(tb*3+fb),2)}, v106, s[20:23], s49 offen offset:{fb*32}")
    def rd_list(k, u):
        sl = k % K2_NS; st = (k * 2 + u) % 3; b = FR + st * 20
        zb = 2 if sl < 4 else 9
        o = []
        for fb in range(3):
            for q in range(2):
                o.append(f"  ds_read_b64_tr_b16 {vr(b+4*fb+2*q,2)}, v{zb+fb} offset:{(sl%4)*12288 + u*32*192 + q*768}")
        for tb in range(2):
            o.append(f"  ds_read_b128 {vr(b+12+4*tb)}, v{122+u} offset:{sl*8192 + tb*2048}")
        return o
    def mf_list(k, u):
        st = (k * 2 + u) % 3; b = FR + st * 20
        o = []
        for fb in range(3):
            for tb in range(2):
                a = ACC + (fb * 2 + tb) * 4
                o.append(f"  v_mfma_f32_16x16x32_bf16 {vr(a)}, {vr(b+4*fb)}, {vr(b+12+4*tb)}, {vr(a)}")
        return o
    def interleave(ms, rs):
        ri = 0
        for i, m in enumerate(ms):
            e(m)
            take = (len(rs) - ri + (len(ms) - i) - 1) // (len(ms) - i)
            for _ in range(take):
                e(rs[ri]); ri += 1
    e("  s_barrier")
    stamp(1, 126)
    for r in rd_list(0, 0) + rd_list(0, 1): e(r)
    for k in range(K2_NIT):
        if k == 8: epi_prefetch()
        if k + 1 < K2_NIT:
            if k < 24: stamp(2 + 2*k, 126)
            e("  s_barrier")
            if k < 24: stamp(3 + 2*k, 126)
        for u in range(2):
            nx = rd_list(k + 1, u) if k + 1 < K2_NIT else []
            e(f"  s_waitcnt lgkmcnt({8 if (k + 1 < K2_NIT or u == 0) else 0})")
            interleave(mf_list(k, u), nx)
    e("  s_waitcnt vmcnt(0)")
    e("  s_nop 7")
    e("  v_lshlrev_b32 v120, 16, v120")
    e("  v_lshlrev_b32 v121, 16, v121")
    e("  s_movk_i32 s48, 1408")
    e("  v_mul_lo_u32 v105, v104, s48")
    e("  v_lshl_add_u32 v105, v14, 3, v105")
    e(f"  s_add_u32 s31, s31, {WS_U}")
    e("  s_cmp_lt_u32 s29, 3")
    e("  s_cselect_b32 s50, 6, 5")
    for fb in range(3):
        lskip = L("k2e")
        if fb == 2:
            e("  s_mul_i32 s49, s25, 3")
            e("  s_add_u32 s49, s49, 2")
            e("  s_cmp_lt_u32 s49, s50")
            lval = L("k2v")
            e(f"  s_cbranch_scc1 {lval}")
            e("  s_cmp_eq_u32 s29, 7")
            e(f"  s_cbranch_scc0 {lskip}")
            for tb in range(2):
                a = ACC + (fb * 2 + tb) * 4
                e(f"  v_mov_b32 v{a}, 0")
                e(f"  v_mov_b32 v{a+1}, 0")
                e(f"  s_add_u32 s49, s31, {tb*16*1408}")
                e(f"  buffer_store_dwordx2 {vr(a,2)}, v105, s[20:23], s49 offen offset:{fb*32}")
            e(f"  s_branch {lskip}")
            e(f"{lval}:")
        for tb in range(2):
            a = ACC + (fb * 2 + tb) * 4
            z = 108 + 2 * (tb * 3 + fb)
            e(f"  v_lshlrev_b32 v60, 16, v{z}")
            e(f"  v_and_b32 v61, 0xffff0000, v{z}")
            e(f"  v_lshlrev_b32 v62, 16, v{z+1}")
            e(f"  v_and_b32 v63, 0xffff0000, v{z+1}")
            for r in range(4):
                e(f"  v_add_f32 v{a+r}, v{a+r}, v{120+tb}")
            for r in range(4):
                e(f"  v_mul_f32 v{a+r}, v{a+r}, v{60+r}")
            e(f"  v_cvt_pk_bf16_f32 v{a}, v{a}, v{a+1}")
            e(f"  v_cvt_pk_bf16_f32 v{a+1}, v{a+2}, v{a+3}")
            e(f"  s_add_u32 s49, s31, {tb*16*1408}")
            e(f"  buffer_store_dwordx2 {vr(a,2)}, v105, s[20:23], s49 offen offset:{fb*32}")
        e(f"{lskip}:")
    stamp(60, 126)
    stamp_flush(20, 126, 124, 33)
    e("  s_endpgm")
    e("k2_prod:")
    e("  s_sub_u32 s25, s24, 4")
    e("  v_lshrrev_b32 v10, 3, v1")
    e("  v_and_b32 v11, 7, v1")
    e("  v_xor_b32 v11, v11, v10")
    e("  v_lshlrev_b32 v11, 4, v11")
    e("  v_lshl_add_u32 v10, v10, 12, v11")
    e("  s_lshl_b32 s48, s28, 18")
    e("  s_lshl_b32 s49, s25, 15")
    e("  s_add_u32 s33, s48, s49")
    e("  s_lshl_b32 s35, s25, 10")
    for p in range(3):
        e(f"  v_add_u32 v2, {64*p}, v1")
        e("  v_mul_u32_u24 v3, 0x5556, v2")
        e("  v_lshrrev_b32 v3, 18, v3")
        e("  v_mul_u32_u24 v4, 12, v3")
        e("  v_sub_u32 v4, v2, v4")
        e("  v_bfe_u32 v5, v3, 3, 1")
        e("  v_lshlrev_b32 v5, 1, v5")
        e("  v_xor_b32 v4, v4, v5")
        e("  v_mul_u32_u24 v3, 192, v3")
        e(f"  v_lshl_add_u32 v{20+p}, v4, 4, v3")
    e("  s_mul_i32 s48, s29, 393216")
    e(f"  s_mul_i32 s49, s25, {16*192}")
    e("  s_add_u32 s32, s48, s49")
    e(f"  s_add_u32 s32, s32, {WS_Z2}")
    e("  s_mul_i32 s36, s25, 3072")
    e(f"  s_add_u32 s36, s36, {K2_ZOFF}")
    q = []
    ROT = int(os.environ.get("ROT", "0"))
    e(f"  s_mul_i32 s37, s28, {ROT}")
    def dma(k):
        sl = k % K2_NS
        e(f"  s_add_u32 s38, s37, {k}")
        e("  s_and_b32 s38, s38, 31")
        e(f"  s_mul_i32 s39, s38, {64*192}")
        e("  s_add_u32 s39, s39, s32")
        e("  s_lshl_b32 s38, s38, 7")
        e("  s_add_u32 s38, s38, s33")
        for m in range(3):
            e(f"  s_add_u32 m0, s36, {sl*12288 + m*1024}")
            e("  s_nop 0")
            e(f"  buffer_load_dwordx4 v{20 + m}, s[20:23], s39 offen lds")
            q.append(k)
        for ii in range(2):
            e(f"  s_add_u32 m0, s35, {sl*8192 + ii*4096}")
            e(f"  s_add_u32 s42, s38, {ii*32*4096}")
            e("  buffer_load_dwordx4 v10, s[12:15], s42 offen lds")
            q.append(k)
    def wait_for(k):
        idx = max(i for i, o in enumerate(q) if o == k)
        e(f"  s_waitcnt vmcnt({min(63, len(q) - 1 - idx)})")
    def bar(k):
        if k < 24: stamp(2 + 2*k, 126)
        e("  s_barrier")
        if k < 24: stamp(3 + 2*k, 126)
    sched(K2_NIT, K2_NS, dma, wait_for, bar, lag=2)
    stamp(62, 126)
    stamp_flush(20, 126, 124, 33)
    e("k2_end:")
    e("  s_endpgm")
    return kd(name, 128)

K3_NS = 8
K3_LDS = K3_NS * 16384
def interleave(ms, rs):
    ri = 0
    for i, m in enumerate(ms):
        e(m)
        take = (len(rs) - ri + (len(ms) - i) - 1) // (len(ms) - i)
        for _ in range(take):
            e(rs[ri]); ri += 1
def gen_k3():
    name = NAME + "_kernel"
    NK = 19
    kernel_begin(name)
    e("  s_cmp_ge_u32 s2, 256")
    e("  s_cbranch_scc1 k3_end")
    if STAMP: e("  v_mov_b32 v127, 0")
    stamp(0)
    rstamp(59, 127)
    e("  s_load_dwordx2 s[4:5], s[0:1], 16")
    e("  s_load_dwordx2 s[6:7], s[0:1], 56")
    e("  s_load_dwordx2 s[8:9], s[0:1], 72")
    e("  s_load_dwordx2 s[10:11], s[0:1], 88")
    e("  v_and_b32 v1, 63, v0")
    e("  v_lshrrev_b32 v2, 6, v0")
    e("  s_nop 0")
    e("  v_readfirstlane_b32 s24, v2")
    e("  s_and_b32 s46, s2, 7")
    e("  s_lshr_b32 s47, s2, 3")
    e("  s_lshr_b32 s28, s46, 1")
    e("  s_lshl_b32 s28, s28, 3")
    e("  s_lshr_b32 s48, s47, 2")
    e("  s_add_u32 s28, s28, s48")
    e("  s_and_b32 s29, s46, 1")
    e("  s_lshl_b32 s29, s29, 2")
    e("  s_and_b32 s48, s47, 3")
    e("  s_add_u32 s29, s29, s48")
    e("  v_and_b32 v13, 15, v1")
    e("  v_lshrrev_b32 v14, 4, v1")
    e("  s_waitcnt lgkmcnt(0)")
    srd(20, 10, WS_SIZE)
    e("  s_cmp_ge_u32 s24, 4")
    e("  s_cbranch_scc1 k3_load")
    srd(52, 8, 2048 * 1024)
    e("  s_and_b32 s25, s24, 1")
    e("  s_lshr_b32 s26, s24, 1")
    ACA = 16; ACB = 32; FR = 48
    e("  v_and_b32 v6, 7, v13")
    e("  v_xor_b32 v6, v6, v14")
    e("  v_lshlrev_b32 v6, 4, v6")
    e("  v_lshl_add_u32 v6, v13, 7, v6")
    e("  s_lshl_b32 s48, s26, 12")
    e("  v_add_u32 v4, s48, v6")
    e("  v_xor_b32 v5, 64, v4")
    e("  v_add_u32 v2, 65536, v4")
    e("  v_add_u32 v3, 65536, v5")
    e("  v_bfe_u32 v6, v1, 2, 2")
    e("  v_and_b32 v7, 1, v14")
    e("  v_lshlrev_b32 v7, 1, v7")
    e("  v_lshrrev_b32 v8, 1, v6")
    e("  v_or_b32 v7, v7, v8")
    e("  v_lshlrev_b32 v7, 1, v7")
    e("  v_bfe_u32 v8, v1, 1, 1")
    e("  v_lshlrev_b32 v9, 10, v14")
    e("  v_lshl_add_u32 v9, v6, 7, v9")
    e("  v_and_b32 v6, 1, v1")
    e("  v_lshl_add_u32 v9, v6, 3, v9")
    e("  s_lshl_b32 s48, s25, 2")
    for nb in range(2):
        e(f"  s_add_u32 s49, s48, {2*nb}")
        e("  v_add_u32 v6, s49, v8")
        e("  v_xor_b32 v6, v6, v7")
        e(f"  v_lshl_add_u32 v{10+nb}, v6, 4, v9")
        e(f"  v_add_u32 v{100+nb}, 65536, v{10+nb}")
    for r in range(16, 48):
        e(f"  v_mov_b32 v{r}, 0")
    e("  s_lshl_b32 s48, s28, 6")
    e("  s_lshl_b32 s49, s26, 5")
    e("  s_add_u32 s48, s48, s49")
    e("  v_add_u32 v104, s48, v13")
    e("  v_lshlrev_b32 v105, 2, v104")
    def rd_list(k, u):
        sl = k % K3_NS; st = (k * 2 + u) % 3; b = FR + st * 16
        so = (sl % 4) * 16384
        wa = 10 if sl < 4 else 100
        ta = 4 if sl < 4 else 2
        o = []
        for nb in range(2):
            for q in range(2):
                o.append(f"  ds_read_b64_tr_b16 {vr(b+4*nb+2*q,2)}, v{wa+nb} offset:{so + 8192 + u*4096 + q*512}")
        for tb in range(2):
            o.append(f"  ds_read_b128 {vr(b+8+4*tb)}, v{ta+u} offset:{so + tb*2048}")
        return o
    def mf_list(k, u):
        st = (k * 2 + u) % 3; b = FR + st * 16
        AC = ACA if k < 8 else ACB
        o = []
        for nb in range(2):
            for tb in range(2):
                a = AC + (nb * 2 + tb) * 4
                o.append(f"  v_mfma_f32_16x16x32_bf16 {vr(a)}, {vr(b+4*nb)}, {vr(b+8+4*tb)}, {vr(a)}")
        return o
    e("  s_barrier")
    stamp(1)
    for r in rd_list(0, 0) + rd_list(0, 1): e(r)
    for k in range(NK):
        if k == 4:
            e(f"  s_mov_b32 s48, {WS_G}")
            e("  buffer_load_dword v120, v105, s[20:23], s48 offen")
            e("  buffer_load_dword v121, v105, s[20:23], s48 offen offset:64")
        if k + 1 < NK:
            stamp(2 + 2*k)
            e("  s_barrier")
            stamp(3 + 2*k)
        for u in range(2):
            nx = rd_list(k + 1, u) if k + 1 < NK else []
            e(f"  s_waitcnt lgkmcnt({6 if (k + 1 < NK or u == 0) else 0})")
            interleave(mf_list(k, u), nx)
    e("  s_waitcnt vmcnt(0)")
    e("  s_nop 7")
    e("  v_sub_f32 v122, 1.0, v120")
    e("  v_sub_f32 v123, 1.0, v121")
    e("  v_lshlrev_b32 v105, 10, v104")
    e("  v_lshl_add_u32 v105, v14, 3, v105")
    e("  s_lshl_b32 s48, s29, 7")
    e("  s_lshl_b32 s49, s25, 6")
    e("  s_add_u32 s48, s48, s49")
    for nb in range(2):
        for tb in range(2):
            a = ACA + (nb * 2 + tb) * 4
            b = ACB + (nb * 2 + tb) * 4
            for r in range(4):
                e(f"  v_mul_f32 v{a+r}, v{a+r}, v{120+tb}")
            for r in range(4):
                e(f"  v_fmac_f32 v{a+r}, v{b+r}, v{122+tb}")
            e(f"  v_cvt_pk_bf16_f32 v{a}, v{a}, v{a+1}")
            e(f"  v_cvt_pk_bf16_f32 v{a+1}, v{a+2}, v{a+3}")
            e(f"  s_add_u32 s49, s48, {tb*16*1024}")
            e(f"  buffer_store_dwordx2 {vr(a,2)}, v105, s[52:55], s49 offen offset:{nb*32}")
    stamp(60)
    stamp_flush(20)
    e("  s_endpgm")
    e("k3_load:")
    srd(12, 4, 512 * 1024)
    srd(16, 6, 688 * 1024)
    e("  s_sub_u32 s25, s24, 4")
    e("  v_lshrrev_b32 v4, 3, v1")
    e("  v_and_b32 v5, 7, v1")
    e("  v_xor_b32 v5, v5, v4")
    e("  v_lshlrev_b32 v5, 4, v5")
    e("  v_lshl_add_u32 v2, v4, 10, v5")
    e("  v_mul_u32_u24 v3, 1408, v4")
    e("  v_add_u32 v3, v3, v5")
    e("  s_and_b32 s48, s25, 1")
    e("  s_lshl_b32 s48, s48, 2")
    e("  v_lshrrev_b32 v5, 4, v1")
    e("  v_and_b32 v5, 1, v5")
    e("  v_lshlrev_b32 v5, 1, v5")
    e("  v_or_b32 v5, s48, v5")
    e("  v_and_b32 v6, 7, v1")
    e("  v_xor_b32 v5, v5, v6")
    e("  v_lshlrev_b32 v5, 4, v5")
    e("  v_lshl_add_u32 v15, v4, 10, v5")
    e("  s_lshl_b32 s48, s28, 6")
    e("  s_lshl_b32 s49, s25, 3")
    e("  s_add_u32 s48, s48, s49")
    e("  s_lshl_b32 s32, s48, 10")
    e(f"  s_add_u32 s32, s32, {WS_O}")
    e("  s_mul_i32 s33, s48, 1408")
    e(f"  s_add_u32 s33, s33, {WS_U}")
    e("  s_lshl_b32 s34, s25, 13")
    e("  s_lshl_b32 s48, s29, 7")
    e("  s_add_u32 s34, s34, s48")
    e("  s_lshl_b32 s35, s25, 10")
    q = []
    def issue(k):
        so = (k % K3_NS) * 16384
        for hf in range(2):
            e(f"  s_add_u32 m0, s35, {so + hf*4096}")
            if k < 8:
                e(f"  s_add_u32 s42, s32, {k*128 + hf*32*1024}")
                e("  buffer_load_dwordx4 v2, s[20:23], s42 offen lds")
            else:
                e(f"  s_add_u32 s42, s33, {(k-8)*128 + hf*32*1408}")
                e("  buffer_load_dwordx4 v3, s[20:23], s42 offen lds")
            q.append(k)
        for hf in range(2):
            e(f"  s_add_u32 m0, s35, {so + 8192 + hf*4096}")
            kk = k if k < 8 else k - 8
            e(f"  s_add_u32 s42, s34, {kk*65536 + hf*32*1024}")
            e(f"  buffer_load_dwordx4 v15, s[{12 if k < 8 else 16}:{15 if k < 8 else 19}], s42 offen lds")
            q.append(k)
    def wait_for(k):
        idx = max(i for i, o in enumerate(q) if o == k)
        e(f"  s_waitcnt vmcnt({min(63, len(q) - 1 - idx)})")
    def bar(k):
        e("  s_barrier")
    sched(NK, K3_NS, issue, wait_for, bar, lag=2)
    e("k3_end:")
    e("  s_endpgm")
    return kd(name, 128)

def header(launches):
    ref = open("cdna_kernels/%s.s.ref" % NAME).read().splitlines()
    for l in ref:
        if l.startswith("; @launch") or not l.startswith(";"): break
        if "Override launch" in l or "grid=ceil" in l: continue
        e(l)
    for l in launches: e(l)
    e('.amdgcn_target "amdgcn-amd-amdhsa--gfx950"')
    e(".text")

if __name__ == "__main__":
    which = sys.argv[1] if len(sys.argv) > 1 else "all"
    launches = [f"; @launch kernel=k1_kernel grid=(256,1,1) block=(768,1,1) lds={K1_LDS}",
                f"; @launch kernel=k2_kernel grid=(256,1,1) block=(512,1,1) lds={K2_LDS}",
                f"; @launch kernel={NAME}_kernel grid=(256,1,1) block=(512,1,1) lds={K3_LDS}"]
    header(launches)
    kds = [gen_k1(), gen_k2(), gen_k3()]
    e('.section .rodata,"a"')
    for k in kds:
        e(".p2align 6")
        e(k)
    dst = sys.argv[2] if len(sys.argv) > 2 else "k.s"
    open(dst, "w").write("\n".join(out) + "\n")
    print("wrote", dst, len(out), "lines")
```
